```python
import torch

def _softmax(x, axis=-1):
    return torch.softmax(x, dim=axis)
def _gelu(x):
    return torch.nn.functional.gelu(x, approximate="tanh")
def _silu(x):
    return torch.nn.functional.silu(x)
def _sigmoid(x):
    return torch.sigmoid(x)
def _layernorm(x, axis=-1, eps=1e-5):
    m = x.mean(dim=axis, keepdim=True)
    v = x.var(dim=axis, keepdim=True, unbiased=False)
    return (x - m) / torch.sqrt(v + eps)
def _scatter_add(tgt, idx, src, axis=0):
    return tgt.clone().index_add_(axis, idx, src)
def _segment_sum(src, seg, n):
    out = torch.zeros((n,) + src.shape[1:], dtype=src.dtype)
    return out.index_add_(0, seg, src)
def _pad(x, pw):
    flat = tuple(v for pair in reversed(pw) for v in pair)
    return torch.nn.functional.pad(x, flat)

kernel_name = 'recurrent_scan__sliding_block__mixer_channel_mlp__prompt'

def setup_inputs():

    _w = (lambda a: (lambda t: t.to(torch.bfloat16) if t.is_floating_point() else t)(torch.as_tensor(a)))
    def _A_setup():
        B, S, D = 1, 2048, 512
        return {
            "x": _w((lambda *s: torch.randn(*s, dtype=torch.bfloat16) * 0.05)(B, S, D)),
            "wqkv": _w((lambda *s: torch.randn(*s, dtype=torch.bfloat16) * 0.05)(D, 3 * D)),
            "wo": _w((lambda *s: torch.randn(*s, dtype=torch.bfloat16) * 0.05)(D, D)),
        }
    _A_in = _A_setup()

    def _B_setup():
        B, S, D, F = 1, 2048, 512, 1792
        return {
            "x": _w((lambda *s: torch.randn(*s, dtype=torch.bfloat16) * 0.05)(B, S, D)),
            "w1": _w((lambda *s: torch.randn(*s, dtype=torch.bfloat16) * 1.6)(D, F) * (D ** -0.5)),
            "b1": _w((lambda *s: torch.randn(*s, dtype=torch.bfloat16) * 0.8)(F)),
            "w2": _w((lambda *s: torch.randn(*s, dtype=torch.bfloat16) * 0.05)(F, D) * (F ** -0.5)),
            "b2": _w((lambda *s: torch.randn(*s, dtype=torch.bfloat16) * 0.05)(D)),
        }
    _B_in = _B_setup()

    return {
        "A_x": _A_in["x"],
        "A_wqkv": _A_in["wqkv"],
        "A_wo": _A_in["wo"],
        "B_x": _B_in["x"],
        "B_w1": _B_in["w1"],
        "B_b1": _B_in["b1"],
        "B_w2": _B_in["w2"],
        "B_b2": _B_in["b2"],
    }

def reference(A_x, A_wqkv, A_wo, B_x, B_w1, B_b1, B_w2, B_b2):
    def _A_ref(x, wqkv, wo):
        B, S, D = x.shape
        H = 32; Dh = D // H; W = 256
        qkv = (lambda x, *d: x.permute(*d))((x @ wqkv).reshape(B, S, 3, H, Dh), 2, 0, 3, 1, 4)
        q, k, v = qkv[0], qkv[1], qkv[2]
        scores = torch.einsum("bhqd,bhkd->bhqk", q, k) * (Dh ** -0.5)
        idx = torch.arange(S)
        mask = (idx[:, None] - idx[None, :] >= 0) & (idx[:, None] - idx[None, :] < W)
        scores = torch.where(mask[None, None], scores, -1e9)
        p = _softmax(scores, axis=-1)
        o = torch.einsum("bhqk,bhkd->bhqd", p, v)
        return (lambda x, *d: x.permute(*d))(o, 0, 2, 1, 3).reshape(B, S, D) @ wo

    def _B_ref(x, w1, b1, w2, b2):
        y = _layernorm(x, axis=-1)
        h = _gelu(torch.einsum("bsd,df->bsf", y, w1) + b1)
        return torch.einsum("bsf,fd->bsd", h, w2) + b2

    x = A_x
    xn = _layernorm(x, axis=-1)
    s = _A_ref(xn, A_wqkv, A_wo)
    g = _silu(_B_ref(xn, B_w1, B_b1, B_w2, B_b2))
    return x + s * g
```

```python
import re
REG_RE = re.compile(r'(?<![\w.])([vsa])\[(\d+):(\d+)\]|(?<![\w.])([vsa])(\d+)(?![\w\[])|(?<![\w.])(vcc|exec|m0|scc)(?![\w])')
def regs_of(s):
    out=[]
    for m in REG_RE.finditer(s):
        if m.group(1):
            for i in range(int(m.group(2)), int(m.group(3))+1): out.append((m.group(1), i))
        elif m.group(4): out.append((m.group(4), int(m.group(5))))
        else: out.append((m.group(6),0))
    return out
TRANS = ("v_exp_f32","v_log_f32","v_rcp_f32","v_rsq_f32","v_sqrt_f32","v_sin_f32","v_cos_f32")
class Ins:
    __slots__=("text","op","kind","defs","uses","tag","passes","wide_store","attrs")
    def __init__(self, text):
        self.text=text; self.tag=None; self.passes=0; self.wide_store=False; self.attrs={}
        t=text.split(";")[0].strip()
        if t.endswith(":"):
            self.op=t; self.kind="label"; self.defs=set(); self.uses=set(); return
        if t=="" or t.startswith("."):
            self.op=t; self.kind="dir"; self.defs=set(); self.uses=set(); return
        sp=t.split(None,1); op=sp[0]; rest=sp[1] if len(sp)>1 else ""
        self.op=op
        ops=[o.strip() for o in self._split(rest)]
        R=[regs_of(o) for o in ops]
        allr=[r for x in R for r in x]
        d=set(); u=set()
        base=op
        for suf in ("_e32","_e64","_dpp","_sdwa"):
            if base.endswith(suf): base=base[:-len(suf)]
        if op.startswith("v_mfma"):
            self.kind="mfma"; d=set(R[0]); u=set(r for x in R[1:] for r in x)
            self.passes = 8 if "32x32x16" in op else (4 if "16x16x32" in op else (2 if "4x4x4" in op else 16))
            self.attrs["A"]=set(R[1]); self.attrs["B"]=set(R[2]); self.attrs["C"]=set(R[3]) if len(R)>3 else set()
            self.attrs["Clist"]=list(R[3]) if len(R)>3 else []; self.attrs["Dlist"]=list(R[0])
        elif op.startswith("v_cmp"):
            self.kind="valu"; d=set(R[0]); u=set(r for x in R[1:] for r in x)
            if op.startswith("v_cmpx"): d.add(("exec",0))
        elif base in ("v_readfirstlane_b32","v_readlane_b32"):
            self.kind="valu"; d=set(R[0]); u=set(r for x in R[1:] for r in x); self.attrs["readlane"]=True
        elif base.startswith("v_permlane") :
            self.kind="valu"; d=set(R[0])|set(R[1]); u=set(d); self.attrs["permlane"]=True
        elif op.startswith("v_"):
            self.kind="trans" if base in TRANS else "valu"
            d=set(R[0]); u=set(r for x in R[1:] for r in x)
            if base in ("v_fmac_f32","v_dot2c_f32_bf16","v_writelane_b32") or "UNUSED_PRESERVE" in text: u|=set(R[0])
            if op.endswith("_dpp") or "row_" in rest or "quad_perm" in rest: self.attrs["dpp"]=True
            if base in ("v_add_co_u32","v_addc_co_u32","v_sub_co_u32"): d|=set(R[1]);
        elif op.startswith("ds_read") or op.startswith("ds_bpermute") or op.startswith("ds_swizzle"):
            self.kind="ds_read"; d=set(R[0]); u=set(r for x in R[1:] for r in x)
        elif op.startswith("ds_"):
            self.kind="ds_write"; u=set(allr)
        elif op.startswith("buffer_load") or op.startswith("global_load"):
            if re.search(r'\blds\b', rest) or "_lds_" in op:
                self.kind="vm_dma"; u=set(allr); u.add(("m0",0))
            else:
                self.kind="vm_load"; d=set(R[0]); u=set(r for x in R[1:] for r in x)
        elif op.startswith("buffer_store") or op.startswith("global_store"):
            self.kind="vm_store"; u=set(allr)
            if "x4" in op or "x3" in op:
                self.wide_store=True
                self.attrs["data"]=set(R[0]) if op.startswith("buffer_store") else set(R[1])
        elif op.startswith("global_atomic") or op.startswith("buffer_atomic"):
            self.kind="vm_store"; u=set(allr)
            if "sc0" in rest: self.kind="vm_load"; d=set(R[0]); u=set(r for x in R[1:] for r in x)
        elif op.startswith("buffer_wbl2") or op.startswith("buffer_inv"):
            self.kind="vm_store"
        elif op.startswith("s_load") or op in ("s_memtime","s_memrealtime"):
            self.kind="smem"; d=set(R[0]); u=set(r for x in R[1:] for r in x)
        elif op=="s_waitcnt": self.kind="wait"
        elif op=="s_barrier": self.kind="barrier"
        elif op=="s_nop": self.kind="nop"; self.attrs["n"]=int(rest)+1
        elif op.startswith("s_cbranch") or op=="s_branch":
            self.kind="branch"
        elif op=="s_endpgm": self.kind="end"
        elif op.startswith("s_cmp") or op.startswith("s_bitcmp"):
            self.kind="salu"; d={("scc",0)}; u=set(allr)
        elif op in ("s_setprio","s_sleep"):
            self.kind="salu"
        elif op.startswith("s_"):
            self.kind="salu"; d=set(R[0]) if R else set(); u=set(r for x in R[1:] for r in x)
            if "saveexec" in op: d.add(("exec",0)); u.add(("exec",0))
            if op.startswith("s_cselect") or op.startswith("s_addc") or op.startswith("s_subb"): u.add(("scc",0))
            if op in("s_addk_i32","s_mulk_i32"): u|=d
        else:
            raise ValueError("unknown instruction: "+text)
        self.defs=d; self.uses=u
    @staticmethod
    def _split(s):
        out=[];depth=0;cur=""
        for ch in s:
            if ch in "[(": depth+=1
            if ch in "])": depth-=1
            if ch=="," and depth==0: out.append(cur); cur=""
            else: cur+=ch
        if cur.strip(): out.append(cur)
        return out

def isv(r): return r[0] in ("v","a")

class Prog:
    def __init__(self):
        self.ins=[]
        self._lab=0
    def __call__(self, s, tag=None):
        last=None
        for l in s.split("\n"):
            if l.strip()=="" : continue
            i=Ins(l.strip()); self.ins.append(i); last=i
        if tag is not None: last.tag=tag
        return last
    def label(self,n): self.ins.append(Ins(n+":"))
    def newlabel(self,b="L"):
        self._lab+=1; return "%s_%d"%(b,self._lab)
    def comment(self,s):
        i=Ins(".dummy"); i.text="; "+s; i.kind="comment"; self.ins.append(i)
    def wait_vm(self, tag, also_lgkm=False):
        i=Ins("s_waitcnt vmcnt(0)"); i.kind="wait_vm_tag"; i.attrs["wtag"]=tag; self.ins.append(i)
    def wait_lgkm0(self):
        i=Ins("s_waitcnt lgkmcnt(0)"); i.kind="wait_lgkm0"; self.ins.append(i)
    def wait_vm0(self):
        i=Ins("s_waitcnt vmcnt(0)"); i.kind="wait_vm0"; self.ins.append(i)
    def raw(self, text):
        i=Ins(".dummy"); i.text=text; i.kind="raw"; self.ins.append(i)
    def fence(self):
        i=Ins(".dummy"); i.text="; fence"; i.kind="fence"; self.ins.append(i)
    def save_state(self,name):
        i=Ins(".dummy"); i.text="; save "+name; i.kind="save"; i.attrs["name"]=name; self.ins.append(i)
    def restore_state(self,name):
        i=Ins(".dummy"); i.text="; restore "+name; i.kind="restore"; i.attrs["name"]=name; self.ins.append(i)
    def merge_state(self,name):
        i=Ins(".dummy"); i.text="; merge "+name; i.kind="merge"; i.attrs["name"]=name; self.ins.append(i)

    def finalize(self):
        out=[]
        lg=[]
        vm=[]
        hist=[]
        saved={}
        stats={"nop":0,"lgkm":0,"vm":0}
        def emit(i):
            out.append(i)
            n = i.attrs.get("n",1) if i.kind=="nop" else 1
            if i.kind in ("comment","dir","label","fence","save","restore","merge"): n=0
            for h in hist: h[1]+=n
            while hist and hist[0][1]>24: hist.pop(0)
            if i.kind in ("valu","trans","mfma","salu","vm_store"): hist.append([i,0])
        def need_nops(c):
            need=0
            cu=c.uses; cd=c.defs
            for (p,dist) in hist:
                req=0
                if p.kind in("valu","trans"):
                    pv={r for r in p.defs if isv(r)}
                    ps={r for r in p.defs if not isv(r)}
                    if c.kind=="mfma" and pv & cu: req=max(req,2)
                    if c.attrs.get("permlane") and pv & cu: req=max(req,2)
                    if c.attrs.get("dpp") and pv & cu: req=max(req,2)
                    if c.attrs.get("readlane") and pv & cu: req=max(req,1)
                    if p.kind=="trans" and c.kind in("valu","mfma","vm_store","ds_write") and pv & cu: req=max(req,1)
                    if ps:
                        if c.kind in("valu","trans") and (ps & cu): req=max(req,2)
                        if c.attrs.get("readlane") and (ps & cu): req=max(req,4)
                        if c.kind.startswith("vm_") and (ps & cu): req=max(req,5)
                        if c.kind=="salu" and (ps & cu): req=max(req,1)
                        if c.kind=="branch" and (("vcc",0) in ps) : req=max(req,1)
                        if ("exec",0) in ps and c.kind=="mfma": req=max(req,4)
                elif p.kind=="mfma":
                    D=p.defs; big={2:5,4:8,8:12,16:20}[p.passes]
                    if c.kind in("valu","trans") and (D & (cu|cd)): req=max(req,big)
                    if c.kind in("vm_store","ds_write","vm_load","ds_read","vm_dma") and (D & (cu|cd)): req=max(req,big)
                    if c.kind=="mfma":
                        if D & (c.attrs["A"]|c.attrs["B"]): req=max(req,big)
                        if D & c.attrs["C"]:
                            same = (c.attrs["Clist"]==p.attrs["Dlist"] and c.passes==p.passes)
                            if not same: req=max(req,{2:4,4:6,8:10,16:18}[p.passes])
                            elif p.passes==2: req=max(req,2)
                        elif D & c.defs:
                            req=max(req,big)
                    C=p.attrs["C"]
                    if c.kind in("valu","trans") and (C & cd) and not (D & cd): req=max(req,{2:1,4:3,8:7,16:15}[p.passes])
                elif p.kind=="salu":
                    if ("m0",0) in p.defs and c.kind=="vm_dma": req=max(req,1)
                elif p.kind=="vm_store" and p.wide_store:
                    dat=p.attrs["data"]
                    if c.kind in("valu","trans","mfma") and (dat & cd): req=max(req,2)
                    elif (dat & cd): req=max(req,1)
                if req-dist>need: need=req-dist
            return need
        def drain_hazards():
            need=0
            for (p,dist) in hist:
                req=0
                if p.kind=="mfma": req={2:5,4:8,8:12,16:20}[p.passes]
                elif p.kind in("valu","trans"):
                    req=2
                    if any(not isv(r) for r in p.defs): req=5
                elif p.kind=="vm_store" and p.wide_store: req=2
                elif p.kind=="salu" and ("m0",0) in p.defs: req=1
                if req-dist>need: need=req-dist
            return need
        def add_nops(n):
            while n>0:
                k=min(n,16); i=Ins("s_nop %d"%(k-1)); emit(i); stats["nop"]+=k; n-=k
        def wait_lg(n):
            del lg[:len(lg)-n]
            i=Ins("s_waitcnt lgkmcnt(%d)"%min(n,15)); i.kind="wait"; emit(i); stats["lgkm"]+=1
        def wait_vmn(n):
            assert n<=63 or True
            m=min(n,63)
            del vm[:len(vm)-m]
            i=Ins("s_waitcnt vmcnt(%d)"%m); i.kind="wait"; emit(i); stats["vm"]+=1
        for c in self.ins:
            k=c.kind
            if k=="save": saved[c.attrs["name"]]=(list(lg),list(vm)); emit(c); continue
            if k=="restore":
                lg[:],vm[:]=list(saved[c.attrs["name"]][0]),list(saved[c.attrs["name"]][1]); hist.clear(); emit(c); continue
            if k=="merge":
                l2,v2=saved[c.attrs["name"]]
                assert not lg and not l2, "merge with outstanding LDS ops"
                a=[(x.kind,x.tag) for x in vm]; b=[(x.kind,x.tag) for x in v2]
                assert a==b, "merge: vm queues differ:\n%s\n%s"%(a,b)
                for x,y in zip(vm,v2):
                    if x is not y: x.attrs.setdefault("alt_defs",set()).update(y.defs)
                emit(c); continue
            if k=="wait_vm_tag":
                idx=None
                for j in range(len(vm)-1,-1,-1):
                    if vm[j].tag==c.attrs["wtag"]: idx=j;break
                if idx is not None: wait_vmn(len(vm)-1-idx)
                continue
            if k=="wait_lgkm0":
                if lg: wait_lg(0)
                continue
            if k=="wait_vm0":
                vm.clear(); i=Ins("s_waitcnt vmcnt(0)"); i.kind="wait"; emit(i); continue
            if k=="fence":
                add_nops(drain_hazards()); emit(c); continue
            if k in("comment","dir","raw"): emit(c); continue
            if k=="wait":
                m=re.search(r'lgkmcnt\((\d+)\)',c.text)
                if m:
                    n=int(m.group(1));
                    if len(lg)>n: del lg[:len(lg)-n]
                m=re.search(r'vmcnt\((\d+)\)',c.text)
                if m:
                    n=int(m.group(1))
                    if len(vm)>n: del vm[:len(vm)-n]
                emit(c); continue
            if k in("label","branch"):
                add_nops(drain_hazards()); emit(c);
                if k=="label": hist.clear()
                continue
            touched=c.uses|c.defs
            idx=None
            for j in range(len(lg)-1,-1,-1):
                if lg[j].kind=="ds_read" and (lg[j].defs & touched): idx=j;break
                if lg[j].kind=="ds_write" and (lg[j].uses & c.defs) and k not in("salu",):
                    pass
            if idx is not None: wait_lg(len(lg)-1-idx)
            idx=None
            for j in range(len(vm)-1,-1,-1):
                if vm[j].kind=="vm_load" and ((vm[j].defs|vm[j].attrs.get("alt_defs",set())) & touched): idx=j;break
            if idx is not None: wait_vmn(len(vm)-1-idx)
            add_nops(need_nops(c))
            emit(c)
            if k in("ds_read","ds_write"): lg.append(c)
            if k=="smem": pass
            if k.startswith("vm_"): vm.append(c)
        self.stats=stats
        return "\n".join(("  "+i.text if i.kind not in("label",) else i.text) for i in out if i.kind not in ("fence","save","restore","merge"))+"\n"
```

```python
import sys, math, struct
from ir import Prog, Ins
KNAME="recurrent_scan__sliding_block__mixer_channel_mlp__prompt_kernel"

def f32(x): return struct.unpack("<I", struct.pack("<f", x))[0]
def hx(x): return "0x%08x" % (x & 0xffffffff)

WS_QKV=0
WS_H=96*64*1024
WS_O=WS_H+64*112*1024
WS_FL=WS_O+64*32*1024
FL_F1=0; FL_F2=4096; FL_F3=8192; FL_BYTES=10240
WS_DBG=WS_FL+16384
WS_SIZE=WS_DBG+(1<<20)
LDS_SCR=81920
LDS_STAT=LDS_SCR
LDS_CS=LDS_SCR+4096
LDS_WQ=65536
LDS_K=0
LDS_V=16384
VSTRIDE=1088
LDS_HR=49152
LDS_WR=98304
LDS_TOTAL=163840
SPIN_MAX=200000
S_X=4; S_U0=8; S_U1=12; S_W1=16; S_WS=20; S_W2=24; S_WO=28; S_OUT=32
S_B1=36; S_B2=38; S_DBG=40
sW=42; sMW=43; sNW=44; sTB=45; sG=46; sJ=47
sU0=48; sU1=49; sU2=50; sUQ=51
sT0=52; sT1=53; sT2=54; sT3=55; sT4=56; sT5=57; sT6=58; sT7=59
sMASKHI=74; sGB=75; sLO32=76
sXOFF=78; sW0OFF=79; sW1OFF=80; sPITCH1=81; sW2OFF=82; sWQOFF=83
sST0=84; sST1=85; sST2=86; sST3=87
sXCD=88; sSLOT=89; sQSC0=90; sQSC1=91
sHD=92; sQB=93; sT2B=94; sC2=95; sISH=96
sA=97; sB=98; sC=99; sD=100; sE=101
def srd(b): return "s[%d:%d]"%(b,b+3)
def vr(b,n=None):
    if n is None or n==1: return "v%d"%b
    return "v[%d:%d]"%(b,b+n-1)

vSTAMP=0
def stamp_flush(P,cfg):
    if not cfg.stamps: return
    P("s_lshl_b32 s66, s2, 3"); P("s_add_u32 s66, s66, s%d"%sW); P("s_lshl_b32 s66, s66, 6"); P("s_add_u32 s66, s66, %d"%WS_DBG)
    P("v_and_b32 v2, 63, v1"); P("v_lshlrev_b32 v2, 2, v2")
    P("s_mov_b64 exec, 0xffff")
    P("buffer_store_dword v%d, v2, %s, s66 offen"%(vSTAMP,srd(S_WS)))
    P("s_mov_b64 exec, -1")
class Cfg:
    stop_after=None
    interleave=True
    stamps=False

def setup(P,cfg):
    P("s_cmp_ge_u32 s2, 256")
    P("s_cbranch_scc1 L_end")
    P("s_load_dwordx4 s[52:55], s[0:1], 0")
    P("s_load_dwordx2 s[56:57], s[0:1], 16")
    P("s_load_dwordx4 s[60:63], s[0:1], 32")
    P("s_load_dwordx4 s[64:67], s[0:1], 48")
    P("s_load_dwordx4 s[68:71], s[0:1], 64")
    P("s_load_dwordx2 s[72:73], s[0:1], 80")
    P("v_lshrrev_b32 v2, 6, v0")
    P("v_and_b32 v1, 63, v0")
    P("v_readfirstlane_b32 s%d, v2"%sW)
    P("s_and_b32 s%d, s2, 7"%sXCD)
    P("s_lshr_b32 s%d, s2, 3"%sSLOT)
    P("s_and_b32 s%d, s%d, 3"%(sMW,sW))
    P("s_lshr_b32 s%d, s%d, 2"%(sNW,sW))
    P("s_lshr_b32 s%d, s%d, 2"%(sA,sXCD))
    P("s_lshl_b32 s%d, s%d, 3"%(sA,sA))
    P("s_lshr_b32 s%d, s%d, 2"%(sB,sSLOT))
    P("s_add_u32 s%d, s%d, s%d"%(sTB,sA,sB))
    P("s_and_b32 s%d, s%d, 3"%(sG,sXCD))
    P("s_and_b32 s%d, s%d, 3"%(sJ,sSLOT))
    P("s_mul_i32 s%d, s%d, 6"%(sA,sG))
    P("s_lshl_b32 s%d, s%d, 1"%(sB,sJ))
    P("s_add_u32 s%d, s%d, 2"%(sC,sJ))
    P("s_cmp_lt_u32 s%d, 2"%sJ)
    P("s_cselect_b32 s%d, s%d, s%d"%(sB,sB,sC))
    P("s_add_u32 s%d, s%d, s%d"%(sU0,sA,sB))
    P("s_mul_i32 s%d, s%d, 7"%(sA,sG))
    P("s_add_u32 s%d, s%d, 6"%(sUQ,sA))
    P("s_add_u32 s%d, s%d, s%d"%(sB,sA,sJ))
    P("s_lshl_b32 s%d, s%d, 1"%(sC,sJ))
    P("s_add_u32 s%d, s%d, s%d"%(sC,sC,sA))
    P("s_sub_u32 s%d, s%d, 2"%(sC,sC))
    P("s_add_u32 s%d, s%d, 1"%(sD,sC))
    P("s_add_u32 s%d, s%d, 1"%(sE,sU0))
    P("s_cmp_lt_u32 s%d, 2"%sJ)
    P("s_cselect_b32 s%d, s%d, s%d"%(sU1,sE,sC))
    P("s_cselect_b32 s%d, s%d, s%d"%(sU2,sB,sD))
    P("s_cselect_b32 s%d, 0, 1"%sISH)
    P("s_movk_i32 s%d, 3584"%sPITCH1)
    P("s_cselect_b32 s%d, 3072, s%d"%(sPITCH1,sPITCH1))
    P("s_mov_b32 s%d, 0xffff0000"%sMASKHI)
    P("s_mov_b32 s%d, -1"%sLO32)
    P("s_mov_b32 s%d, 0"%(sLO32+1))
    P("s_waitcnt lgkmcnt(0)")
    def mk(b, ptr, size):
        P("s_mov_b32 s%d, s%d"%(b,ptr)); P("s_and_b32 s%d, s%d, 0xffff"%(b+1,ptr+1))
        P("s_mov_b32 s%d, %d"%(b+2,size)); P("s_mov_b32 s%d, 0x00020000"%(b+3))
    mk(S_X,52,2097152); mk(S_U0,54,1572864); mk(S_W1,60,1835008)
    P("s_cmp_lt_u32 s%d, 2"%sJ)
    P("s_cselect_b32 s%d, s54, s60"%(S_U1))
    P("s_cselect_b32 s%d, s55, s61"%(S_U1+1))
    P("s_and_b32 s%d, s%d, 0xffff"%(S_U1+1,S_U1+1))
    P("s_cmp_lt_u32 s%d, 2"%sJ)
    P("s_mov_b32 s%d, 1835008"%(S_U1+2))
    P("s_cselect_b32 s%d, 1572864, s%d"%(S_U1+2,S_U1+2))
    P("s_mov_b32 s%d, 0x00020000"%(S_U1+3))
    mk(S_WS,72,WS_SIZE); mk(S_W2,64,1835008); mk(S_WO,56,524288); mk(S_OUT,68,2097152)
    P("s_mov_b32 s%d, s62"%S_B1); P("s_mov_b32 s%d, s63"%(S_B1+1))
    P("s_mov_b32 s%d, s66"%S_B2); P("s_mov_b32 s%d, s67"%(S_B2+1))
    P("s_mov_b32 s%d, s70"%S_DBG); P("s_mov_b32 s%d, s71"%(S_DBG+1))

def stamp(P,cfg,idx):
    if not cfg.stamps: return
    P.wait_lgkm0()
    P("s_memrealtime s[66:67]")
    P("s_waitcnt lgkmcnt(0)")
    P("v_writelane_b32 v%d, s66, %d"%(vSTAMP,idx))

vLANE=1; vSEL=2; vXA=6; vWA=10; vX0=14; vX1=15; vWQ=16; vW1=17; vU1=18; vWQT=19
vST=20; vCS0=24; vCS1=28; vWF=32; vACC0=48; vACC1=64; vACC2=80
vAUGX=96; vAUGW=100; vRS0=104; vRS1=105; vRR=106; vB1a=107; vB1b=108; vB1c=109
vT=110
vGA=126; vL16=127
vXF=128
def X(k): return vr(vXF+4*k,4)

def p1_dma_stage(P,st):
    slot=(st&3)*32768
    P("s_add_u32 m0, s%d, %d"%(sA,slot))
    P("s_add_u32 s%d, s%d, %d"%(sC,sXOFF,st*128))
    P("buffer_load_dwordx4 v%d, %s, s%d offen lds"%(vX0,srd(S_X),sC))
    P("s_add_u32 m0, s%d, %d"%(sA,slot+1024))
    P("buffer_load_dwordx4 v%d, %s, s%d offen lds"%(vX1,srd(S_X),sC))
    P("s_add_u32 m0, s%d, %d"%(sB,slot+16384))
    P("s_add_u32 s%d, s%d, %d"%(sC,sW0OFF,st*64*3072))
    P("buffer_load_dwordx4 v%d, %s, s%d offen lds"%(vWQ,srd(S_U0),sC))
    P("s_add_u32 m0, s%d, %d"%(sB,slot+24576))
    P("s_mul_i32 s%d, s%d, %d"%(sC,sPITCH1,st*64))
    P("s_add_u32 s%d, s%d, s%d"%(sC,sC,sW1OFF))
    P("buffer_load_dwordx4 v%d, %s, s%d offen lds"%(vU1,srd(S_U1),sC), tag="st%d"%st)

def p1_dma_w2(P,half):
    for q in range(4*half,4*half+4):
        P("s_add_u32 m0, s%d, %d"%(sB,q*8192))
        P("s_add_u32 s%d, s%d, %d"%(sC,sW2OFF,q*64*3584))
        P("buffer_load_dwordx4 v%d, %s, s%d offen lds"%(vW1,srd(S_W1),sC), tag="w2_%d"%half)
def p1_dma_wq(P):
    for p in range(2):
        P("s_add_u32 m0, s%d, %d"%(sA,LDS_WQ+p*1024))
        P("s_add_u32 s%d, s%d, %d"%(sC,sWQOFF,p*32*3584))
        P("buffer_load_dwordx4 v%d, %s, s%d offen lds"%(vWQT,srd(S_W1),sC), tag="wq")

def p1_setup(P,cfg):
    t=vT
    P("v_lshrrev_b32 v%d, 3, v%d"%(t,vLANE))
    P("v_and_b32 v%d, 7, v%d"%(t+1,vLANE))
    P("v_lshrrev_b32 v%d, 1, v%d"%(t+2,t))
    P("v_xor_b32 v%d, v%d, v%d"%(t+3,t+1,t+2))
    P("v_xor_b32 v%d, 4, v%d"%(t+4,t+3))
    P("s_lshl_b32 s%d, s%d, 4"%(sA,sW))
    P("v_add_u32 v%d, s%d, v%d"%(t+5,sA,t))
    P("v_lshlrev_b32 v%d, 10, v%d"%(t+5,t+5))
    P("v_lshl_add_u32 v%d, v%d, 4, v%d"%(vX0,t+3,t+5))
    P("v_add_u32 v%d, 8192, v%d"%(t+5,t+5))
    P("v_lshl_add_u32 v%d, v%d, 4, v%d"%(vX1,t+4,t+5))
    P("v_and_b32 v%d, 1, v%d"%(t+2,t+2))
    P("v_lshlrev_b32 v%d, 2, v%d"%(t+2,t+2))
    P("v_xor_b32 v%d, v%d, v%d"%(t+3,t+1,t+2))
    P("v_lshlrev_b32 v%d, 4, v%d"%(t+3,t+3))
    P("s_lshl_b32 s%d, s%d, 3"%(sA,sW))
    P("v_add_u32 v%d, s%d, v%d"%(t+5,sA,t))
    P("v_mul_u32_u24 v%d, 3072, v%d"%(t+6,t+5))
    P("v_add_u32 v%d, v%d, v%d"%(vWQ,t+6,t+3))
    P("v_mul_u32_u24 v%d, 3584, v%d"%(t+6,t+5))
    P("v_add_u32 v%d, v%d, v%d"%(vW1,t+6,t+3))
    P("v_mul_u32_u24 v%d, s%d, v%d"%(t+6,sPITCH1,t+5))
    P("v_add_u32 v%d, v%d, v%d"%(vU1,t+6,t+3))
    P("v_lshrrev_b32 v%d, 1, v%d"%(t+5,vLANE))
    P("s_lshl_b32 s%d, s%d, 6"%(sA,sW))
    P("v_add_u32 v%d, s%d, v%d"%(t+5,sA,t+5))
    P("v_mul_u32_u24 v%d, 3584, v%d"%(t+5,t+5))
    P("v_and_b32 v%d, 1, v%d"%(t+6,vLANE))
    P("v_lshl_add_u32 v%d, v%d, 4, v%d"%(vWQT,t+6,t+5))
    P("s_lshl_b32 s%d, s%d, 17"%(sXOFF,sTB))
    P("s_lshl_b32 s%d, s%d, 7"%(sW0OFF,sU0))
    P("s_lshl_b32 s%d, s%d, 7"%(sW1OFF,sU1))
    P("s_lshl_b32 s%d, s%d, 7"%(sW2OFF,sU2))
    P("s_lshl_b32 s%d, s%d, 7"%(sWQOFF,sUQ))
    P("s_lshl_b32 s%d, s%d, 5"%(sC,sJ))
    P("s_add_u32 s%d, s%d, s%d"%(sWQOFF,sWQOFF,sC))
    P("s_lshl_b32 s%d, s%d, 11"%(sA,sW))
    P("s_lshl_b32 s%d, s%d, 10"%(sB,sW))
    L=P.newlabel("L_noclr")
    P("s_lshl_b32 s%d, s2, 3"%sC); P("s_add_u32 s%d, s%d, s%d"%(sC,sC,sW)); P("s_cmp_lg_u32 s%d, 7"%sC)
    P("s_cbranch_scc1 %s"%L)
    P("v_mov_b32 v%d, 0"%(t+8)); P("v_mov_b32 v%d, 0"%(t+9)); P("v_mov_b32 v%d, 0"%(t+10)); P("v_mov_b32 v%d, 0"%(t+11))
    P("v_lshlrev_b32 v%d, 4, v%d"%(t+12,vLANE))
    for i in range(FL_BYTES//1024):
        P("s_mov_b32 s%d, %d"%(sC,WS_FL+i*1024))
        P.raw("  buffer_store_dwordx4 %s, v%d, %s, s%d offen sc1"%(vr(t+8,4),t+12,srd(S_WS),sC))
    P("s_nop 1")
    P.label(L)
    for st in range(4): p1_dma_stage(P,st)
    P("v_and_b32 v%d, 31, v%d"%(t,vLANE))
    P("s_lshl_b32 s%d, s%d, 5"%(sC,sNW))
    P("v_add_u32 v%d, s%d, v%d"%(t+1,sC,t))
    P("s_lshl_b32 s%d, s%d, 6"%(sC,sU1)); P("v_add_u32 v%d, s%d, v%d"%(t+2,sC,t+1)); P("v_lshlrev_b32 v%d, 1, v%d"%(t+2,t+2))
    P("s_lshl_b32 s%d, s%d, 6"%(sC,sU2)); P("v_add_u32 v%d, s%d, v%d"%(t+3,sC,t+1)); P("v_lshlrev_b32 v%d, 1, v%d"%(t+3,t+3))
    P("v_and_b32 v%d, 15, v%d"%(t+4,vLANE))
    P("s_lshl_b32 s%d, s%d, 6"%(sC,sUQ)); P("s_lshl_b32 s%d, s%d, 4"%(sD,sJ)); P("s_add_u32 s%d, s%d, s%d"%(sC,sC,sD))
    P("v_add_u32 v%d, s%d, v%d"%(t+4,sC,t+4)); P("v_lshlrev_b32 v%d, 1, v%d"%(t+4,t+4))
    P("v_mul_u32_u24 v%d, s%d, v%d"%(t+2,sISH,t+2))
    P("global_load_ushort v%d, v%d, s[%d:%d]"%(vB1a,t+2,S_B1,S_B1+1))
    P("global_load_ushort v%d, v%d, s[%d:%d]"%(vB1b,t+3,S_B1,S_B1+1))
    P("global_load_ushort v%d, v%d, s[%d:%d]"%(vB1c,t+4,S_B1,S_B1+1), tag="b1")
    P("s_xor_b32 s%d, s%d, s%d"%(sC,sMW,sNW))
    P("v_and_b32 v%d, 31, v%d"%(t,vLANE))
    P("v_lshrrev_b32 v%d, 5, v%d"%(t+1,vLANE))
    P("v_lshrrev_b32 v%d, 1, v%d"%(t+2,t)); P("v_and_b32 v%d, 7, v%d"%(t+2,t+2))
    P("s_lshl_b32 s%d, s%d, 5"%(sD,sMW)); P("v_add_u32 v%d, s%d, v%d"%(t+3,sD,t)); P("v_lshlrev_b32 v%d, 7, v%d"%(t+3,t+3))
    for i in range(4):
        P("s_xor_b32 s%d, s%d, %d"%(sD,sC,i)); P("s_lshl_b32 s%d, s%d, 1"%(sD,sD))
        P("v_add_u32 v%d, s%d, v%d"%(t+4,sD,t+1))
        P("v_xor_b32 v%d, v%d, v%d"%(t+4,t+4,t+2))
        P("v_lshl_add_u32 v%d, v%d, 4, v%d"%(vXA+i,t+4,t+3))
    P("v_and_b32 v%d, 15, v%d"%(t,vLANE)); P("v_lshrrev_b32 v%d, 2, v%d"%(t,t))
    P("v_and_b32 v%d, 3, v%d"%(t+2,vLANE))
    P("v_lshrrev_b32 v%d, 4, v%d"%(t+3,vLANE)); P("v_and_b32 v%d, 1, v%d"%(t+3,t+3))
    P("v_lshlrev_b32 v%d, 1, v%d"%(t+3,t+3))
    P("v_lshrrev_b32 v%d, 1, v%d"%(t+4,t+2)); P("v_add_u32 v%d, v%d, v%d"%(t+3,t+3,t+4))
    P("s_lshl_b32 s%d, s%d, 2"%(sD,sNW)); P("v_add_u32 v%d, s%d, v%d"%(t+3,sD,t+3))
    P("v_lshrrev_b32 v%d, 1, v%d"%(t+4,t)); P("v_lshlrev_b32 v%d, 2, v%d"%(t+4,t+4))
    P("v_xor_b32 v%d, v%d, v%d"%(t+3,t+3,t+4)); P("v_lshlrev_b32 v%d, 4, v%d"%(t+3,t+3))
    P("v_and_b32 v%d, 1, v%d"%(t+4,t+2)); P("v_lshl_add_u32 v%d, v%d, 3, v%d"%(t+3,t+4,t+3))
    P("v_lshl_add_u32 v%d, v%d, 3, v%d"%(t+4,t+1,t))
    P("v_lshl_add_u32 v%d, v%d, 7, v%d"%(t+3,t+4,t+3))
    for i in range(4):
        P("s_xor_b32 s%d, s%d, %d"%(sD,sC,i)); P("s_lshl_b32 s%d, s%d, 11"%(sD,sD))
        P("v_add_u32 v%d, s%d, v%d"%(vWA+i,sD,t+3))
    m=0
    for b in (0,32,8,40,20,52,28,60): m|=1<<b
    P("s_mov_b32 s52, %s"%hx(m&0xffffffff)); P("s_mov_b32 s53, %s"%hx(m>>32))
    P("v_mov_b32 v%d, 0x3f803f80"%(t))
    for r in range(4): P("v_cndmask_b32 v%d, 0, v%d, s[52:53]"%(vSEL+r,t))
    for r in range(4): P("v_mov_b32 v%d, 0"%(vST+r))
    P("v_lshlrev_b32 v%d, 4, v%d"%(vL16,vLANE))
    P("v_mov_b32 v%d, %s"%(vGA,hx(f32(-2*0.7978845608028654*1.4426950408889634))))
    P("s_mov_b32 s%d, %s"%(sGB,hx(f32(-2*0.7978845608028654*1.4426950408889634*0.044715))))

def p1_reads(P,st,i):
    slot=(st&1)*32768
    b=vWF+8*(i&1)
    P("ds_read_b128 %s, v%d offset:%d"%(X(4*st+i),vXA+i,slot))
    P("ds_read_b64_tr_b16 %s, v%d offset:%d"%(vr(b,2),vWA+i,slot+16384))
    P("ds_read_b64_tr_b16 %s, v%d offset:%d"%(vr(b+2,2),vWA+i,slot+16384+512))
    P("ds_read_b64_tr_b16 %s, v%d offset:%d"%(vr(b+4,2),vWA+i,slot+24576))
    P("ds_read_b64_tr_b16 %s, v%d offset:%d"%(vr(b+6,2),vWA+i,slot+24576+512))
def p1_toggle(P):
    for r in list(range(vXA,vXA+4))+list(range(vWA,vWA+4)):
        P("v_xor_b32 v%d, 0x10000, v%d"%(r,r))
def p1_mfma(P,st,i):
    b=vWF+8*(i&1); first=(st==0 and i==0)
    P("v_mfma_f32_32x32x16_bf16 %s, %s, %s, %s"%(vr(vACC0,16),vr(b,4),X(4*st+i),"0" if first else vr(vACC0,16)))
    P("v_mfma_f32_32x32x16_bf16 %s, %s, %s, %s"%(vr(vACC1,16),vr(b+4,4),X(4*st+i),"0" if first else vr(vACC1,16)))
    if i==0:
        P("v_mfma_f32_16x16x32_bf16 %s, %s, %s, %s"%(vr(vCS0,4),vr(vSEL,4),vr(b,4),"0" if st==0 else vr(vCS0,4)))
        P("v_mfma_f32_16x16x32_bf16 %s, %s, %s, %s"%(vr(vCS1,4),vr(vSEL,4),vr(b+4,4),"0" if st==0 else vr(vCS1,4)))
def p1_stats(k):
    L=[]; t=vT
    for r in range(4):
        x=vXF+4*k+r; a=t+2*(r&1)
        L.append("v_lshlrev_b32 v%d, 16, v%d"%(a,x))
        L.append("v_and_b32 v%d, s%d, v%d"%(a+1,sMASKHI,x))
        L.append("v_add_f32 v%d, v%d, v%d"%(vST,vST,a))
        L.append("v_add_f32 v%d, v%d, v%d"%(vST+1,vST+1,a+1))
        L.append("v_fmac_f32 v%d, v%d, v%d"%(vST+2,a,a))
        L.append("v_fmac_f32 v%d, v%d, v%d"%(vST+3,a+1,a+1))
    return L

def emit(P,L):
    for x in L:
        if callable(x): x(P)
        else: P(x)

def merge(main, fill, per=None, start=0):
    def cost(s):
        if callable(s): return 0
        op=s.split()[0]
        if op.startswith("v_mfma"): return 8
        if op in("v_exp_f32","v_rcp_f32","v_rsq_f32"): return 8
        if op.startswith("v_"): return 4
        return 2
    nm=sum(1 for s in main[start:] if not callable(s) and s.startswith("v_mfma"))
    tot=sum(cost(s) for s in fill)
    out=list(main[:start]); fi=0; acc=0; seen=0
    for s in main[start:]:
        out.append(s)
        if not callable(s) and s.startswith("v_mfma"):
            seen+=1
            target=tot*seen/max(nm,1)
            while fi<len(fill) and acc+cost(fill[fi])*0.5<=target:
                out.append(fill[fi]); acc+=cost(fill[fi]); fi+=1
    out+=fill[fi:]
    return out

def stats_finalize():
    t=vT; L=[]
    L.append("ds_read_b128 %s, v%d"%(vr(t,4),t+14))
    L.append("ds_read_b128 %s, v%d offset:16"%(vr(t+4,4),t+14))
    L+=["v_add_f32 v%d, v%d, v%d"%(t,t,t+2),"v_add_f32 v%d, v%d, v%d"%(t+1,t+1,t+3),
        "v_add_f32 v%d, v%d, v%d"%(t+4,t+4,t+6),"v_add_f32 v%d, v%d, v%d"%(t+5,t+5,t+7),
        "v_add_f32 v%d, v%d, v%d"%(t,t,t+4),"v_add_f32 v%d, v%d, v%d"%(t+1,t+1,t+5),
        "v_mul_f32 v%d, %s, v%d"%(t,hx(f32(1/512.)),t),
        "v_mul_f32 v%d, %s, v%d"%(t+1,hx(f32(1/512.)),t+1),
        "v_fma_f32 v%d, -v%d, v%d, v%d"%(t+1,t,t,t+1),
        "v_max_f32 v%d, 0, v%d"%(t+1,t+1),
        "v_add_f32 v%d, %s, v%d"%(t+2,hx(f32(1e-5)),t+1),
        "v_rsq_f32 v%d, v%d"%(t+2,t+2),
        "v_mul_f32 v%d, v%d, v%d"%(t+3,t+1,t+2),
        "v_mul_f32 v%d, v%d, v%d"%(t+3,t+3,t+2),
        "v_add_f32 v%d, %s, v%d"%(t+3,hx(f32(1e-5)),t+3),
        "v_rsq_f32 v%d, v%d"%(t+3,t+3),
        "v_mul_f32 v%d, s%d, v%d"%(vRS0,sQSC0,t+2),
        "v_mul_f32 v%d, v%d, v%d"%(vRR,t+2,t+3),
        "v_mul_f32 v%d, s%d, v%d"%(vRS1,sQSC1,t+2),
        "v_rcp_f32 v%d, v%d"%(t+4,vRR),
        "v_sub_f32 v%d, 0, v%d"%(t,t),
        "v_cvt_pk_bf16_f32 v%d, v%d, v%d"%(t+5,t,t),
        "v_cvt_pk_bf16_f32 v%d, v%d, v%d"%(t+6,t+4,t+4),
        "v_and_b32 v%d, s%d, v%d"%(t+7,sMASKHI,t+5),
        "v_and_b32 v%d, s%d, v%d"%(t+6,sMASKHI,t+6),
        "v_sub_f32 v%d, v%d, v%d"%(t+7,t,t+7),
        "v_sub_f32 v%d, v%d, v%d"%(t+6,t+4,t+6),
        "v_cvt_pk_bf16_f32 v%d, v%d, v%d"%(t+7,t+7,t+4),
        "v_cvt_pk_bf16_f32 v%d, v%d, 0"%(t+6,t+6),
        "v_cndmask_b32 v%d, 0, v%d, s[%d:%d]"%(vAUGX,t+5,sLO32,sLO32+1),
        "v_cndmask_b32 v%d, 0, v%d, s[%d:%d]"%(vAUGX+1,t+7,sLO32,sLO32+1),
        "v_cndmask_b32 v%d, 0, v%d, s[%d:%d]"%(vAUGX+2,t+6,sLO32,sLO32+1),
        "v_mov_b32 v%d, 0"%(vAUGX+3)]
    return L
def augw(csreg, breg, acc, addr, blk):
    c=csreg; t=vT+12
    L=["ds_read_b128 %s, v%d offset:%d"%(vr(c,4),addr,blk*1024),
       "v_add_f32 v%d, v%d, v%d"%(c,c,c+1),"v_add_f32 v%d, v%d, v%d"%(c+2,c+2,c+3),"v_add_f32 v%d, v%d, v%d"%(c,c,c+2),
       "v_cvt_pk_bf16_f32 v%d, v%d, v%d"%(c+1,c,c),
       "v_and_b32 v%d, s%d, v%d"%(c+2,sMASKHI,c+1),
       "v_sub_f32 v%d, v%d, v%d"%(c+2,c,c+2),
       "v_cvt_pk_bf16_f32 v%d, v%d, v%d"%(vAUGW,c,c+2)]
    if breg is None:
        L+=["v_and_b32 v%d, 0xffff, v%d"%(vAUGW+1,c+1),"v_mov_b32 v%d, 0"%(vAUGW+2)]
    else:
        L+=["v_perm_b32 v%d, v%d, v%d, s%d"%(vAUGW+1,breg,c+1,sE),"v_mov_b32 v%d, v%d"%(vAUGW+2,breg)]
    L+=["v_mov_b32 v%d, 0"%(vAUGW+3),
        "v_mfma_f32_32x32x16_bf16 %s, %s, %s, %s"%(vr(acc,16),vr(vAUGW,4),vr(vAUGX,4),vr(acc,16))]
    return L
def epi_qkv(acc, rs, soff0, soff1, tag):
    L=[]
    for v in range(16): L.append("v_mul_f32 v%d, v%d, v%d"%(acc+v,rs,acc+v))
    for k in range(8): L.append("v_cvt_pk_bf16_f32 v%d, v%d, v%d"%(acc+k,acc+2*k,acc+2*k+1))
    L.append("buffer_store_dwordx4 %s, v%d, %s, s%d offen sc1"%(vr(acc,4),vL16,srd(S_WS),soff0))
    L.append(lambda P: P("buffer_store_dwordx4 %s, v%d, %s, s%d offen sc1"%(vr(acc+4,4),vL16,srd(S_WS),soff1),tag=tag))
    return L
def epi_gelu(acc, nreg, soff, tag):
    L=[]; t=vT
    for g0 in range(0,nreg,4):
        R=range(g0,g0+4)
        for v in R: L.append("v_mul_f32 v%d, v%d, v%d"%(acc+v,vRR,acc+v))
        for v in R: L.append("v_mul_f32 v%d, v%d, v%d"%(t+(v&3),acc+v,acc+v))
        for v in R: L.append("v_fma_f32 v%d, v%d, s%d, v%d"%(t+(v&3),t+(v&3),sGB,vGA))
        for v in R: L.append("v_mul_f32 v%d, v%d, v%d"%(t+(v&3),t+(v&3),acc+v))
        for v in R: L.append("v_exp_f32 v%d, v%d"%(t+(v&3),t+(v&3)))
        for v in R: L.append("v_add_f32 v%d, 1.0, v%d"%(t+(v&3),t+(v&3)))
        for v in R: L.append("v_rcp_f32 v%d, v%d"%(t+(v&3),t+(v&3)))
        for v in R: L.append("v_mul_f32 v%d, v%d, v%d"%(acc+v,acc+v,t+(v&3)))
        for k in (g0//2,g0//2+1): L.append("v_cvt_pk_bf16_f32 v%d, v%d, v%d"%(acc+k,acc+2*k,acc+2*k+1))
        if g0==4:
            if nreg==8: L.append(lambda P: P("buffer_store_dwordx4 %s, v%d, %s, s%d offen sc1"%(vr(acc,4),vL16,srd(S_WS),soff),tag=tag))
            else: L.append("buffer_store_dwordx4 %s, v%d, %s, s%d offen sc1"%(vr(acc,4),vL16,srd(S_WS),soff))
        if g0==12:
            L.append(lambda P: P("buffer_store_dwordx4 %s, v%d, %s, s%d offen offset:1024 sc1"%(vr(acc+4,4),vL16,srd(S_WS),soff),tag=tag))
    return L

def p1(P,cfg):
    t=vT
    p1_setup(P,cfg)
    stamp(P,cfg,0)
    qs=hx(f32(0.25*1.4426950408889634))
    P("s_cmp_lt_u32 s%d, 8"%sU0); P("s_cselect_b32 s%d, %s, 1.0"%(sQSC0,qs))
    P("s_cmp_lt_u32 s%d, 8"%sU1); P("s_cselect_b32 s%d, %s, 1.0"%(sQSC1,qs))
    P("s_lshl_b32 s%d, s%d, 2"%(sC,sTB)); P("s_add_u32 s%d, s%d, s%d"%(sC,sC,sMW))
    P("s_lshl_b32 s%d, s%d, 1"%(sD,sNW))
    def qkvoff(dst,u):
        P("s_lshl_b32 s%d, s%d, 2"%(dst,u)); P("s_add_u32 s%d, s%d, s%d"%(dst,dst,sD)); P("s_lshl_b32 s%d, s%d, 6"%(dst,dst))
        P("s_add_u32 s%d, s%d, s%d"%(dst,dst,sC)); P("s_lshl_b32 s%d, s%d, 10"%(dst,dst))
    def hoff(dst,u,extra_reg=None):
        P("s_mul_i32 s%d, s%d, 112"%(dst,sC)); P("s_lshl_b32 s%d, s%d, 2"%(sE,u)); P("s_add_u32 s%d, s%d, s%d"%(dst,dst,sE))
        P("s_add_u32 s%d, s%d, s%d"%(dst,dst,extra_reg)); P("s_lshl_b32 s%d, s%d, 10"%(dst,dst)); P("s_add_u32 s%d, s%d, %d"%(dst,dst,WS_H))
    qkvoff(sST0,sU0)
    qkvoff(sST1,sU1); hoff(sT2,sU1,sD)
    P("s_cmp_eq_u32 s%d, 1"%sISH); P("s_cselect_b32 s%d, s%d, s%d"%(sST1,sT2,sST1))
    hoff(sST2,sU2,sD); hoff(sST3,sUQ,sJ)
    P("s_mov_b32 s%d, 0x05040100"%sE)
    vSTW=vT+13; vSTR=vT+14
    P.wait_vm("st0")
    L=P.newlabel("L_nogo")
    P("s_lshl_b32 s%d, s2, 3"%sC); P("s_add_u32 s%d, s%d, s%d"%(sC,sC,sW)); P("s_cmp_lg_u32 s%d, 7"%sC)
    P("s_cbranch_scc1 %s"%L)
    P("v_mov_b32 v%d, 0"%t); P("v_mov_b32 v%d, 1"%(t+1))
    P("s_mov_b64 exec, 1")
    P.raw("  global_store_dword v%d, v%d, s[%d:%d] sc1"%(t,t+1,S_DBG,S_DBG+1))
    P("s_mov_b64 exec, -1")
    P.label(L)
    P("s_barrier")
    stamp(P,cfg,1)
    p1_reads(P,0,0)
    for st in range(8):
        for i in range(3):
            p1_reads(P,st,i+1)
            main=[]
            p1_mfma(P,st,i)
            if i in (0,2): emit(P,p1_stats(4*st+i))
        P.wait_lgkm0()
        if st<7: P.wait_vm("st%d"%(st+1))
        else: P.wait_vm("w2_0")
        P("s_barrier")
        if st<4: p1_dma_stage(P,st+4)
        elif st==4: p1_dma_w2(P,0)
        elif st==5: p1_dma_w2(P,1)
        elif st==6: p1_dma_wq(P)
        elif st==7 and cfg.stop_after is None: g2_dma_w_prefetch(P)
        if st&1: p1_toggle(P)
        if st<7: p1_reads(P,st+1,0)
        else: passB_reads(P,0)
        p1_mfma(P,st,3)
    stamp(P,cfg,2)
    P("v_and_b32 v%d, 31, v%d"%(t,vLANE)); P("v_lshrrev_b32 v%d, 5, v%d"%(t+1,vLANE))
    P("s_lshl_b32 s%d, s%d, 10"%(sC,sMW)); P("s_add_u32 s%d, s%d, %d"%(sC,sC,LDS_STAT))
    P("v_lshlrev_b32 v%d, 5, v%d"%(t+2,t)); P("v_add_u32 v%d, s%d, v%d"%(vSTR,sC,t+2))
    P("s_lshl_b32 s%d, s%d, 4"%(sC,sNW)); P("v_lshl_add_u32 v%d, v%d, 3, v%d"%(t+3,t+1,vSTR)); P("v_add_u32 v%d, s%d, v%d"%(t+3,sC,t+3))
    P("v_add_f32 v%d, v%d, v%d"%(vST,vST,vST+1)); P("v_add_f32 v%d, v%d, v%d"%(vST+1,vST+2,vST+3))
    P("ds_write_b64 v%d, %s"%(t+3,vr(vST,2)))
    vCSR=vST+2; vCSW=vST+3
    P("s_lshl_b32 s%d, s%d, 9"%(sC,sNW)); P("s_add_u32 s%d, s%d, %d"%(sC,sC,LDS_CS))
    P("v_lshlrev_b32 v%d, 4, v%d"%(t+4,t)); P("v_add_u32 v%d, s%d, v%d"%(t+4,sC,t+4))
    P("s_lshl_b32 s%d, s%d, 2"%(sC,sMW)); P("v_add_u32 v%d, s%d, v%d"%(t+5,sC,t+4))
    P("ds_write_b32 v%d, v%d"%(t+5,vCS0)); P("ds_write_b32 v%d, v%d offset:1024"%(t+5,vCS1))
    P("v_mov_b32 v%d, v%d"%(vCSR,t+4)); P("v_mov_b32 v%d, v%d"%(vCSW,t+5))
    def passB_main(k0,k1):
        L=[]
        for ks in range(k0,k1):
            if ks+2<32: L+=passB_reads_L(ks+2)
            L+=passB_mfma_L(ks)
        return L
    emit(P,passB_reads_L(1))
    emit(P,passB_main(0,2))
    P.wait_lgkm0(); P.wait_vm("w2_1"); P("s_barrier")
    P("v_mov_b32 v%d, 0"%vWQ)
    P("global_load_dword v%d, v%d, s[%d:%d] sc1"%(vX0,vWQ,S_DBG,S_DBG+1), tag="go")
    Lh=P.newlabel("L_passB_h"); Lj=P.newlabel("L_passB_done")
    P("s_cmp_eq_u32 s%d, 1"%sISH); P("s_add_u32 s%d, s%d, 65536"%(sT0,sST0)); P("s_add_u32 s%d, s%d, 65536"%(sT1,sST1))
    P("s_cmp_eq_u32 s%d, 1"%sISH)
    P("s_cbranch_scc1 %s"%Lh)
    P.save_state("pb")
    for typ in (0,1):
        if typ==1:
            P.label(Lh); P.restore_state("pb")
        fill=stats_finalize()+augw(vT+8,None,vACC0,vCSR,0)+augw(vT+8,(vB1a if typ else None),vACC1,vCSR,1)
        fill+=epi_qkv(vACC0,vRS0,sST0,sT0,"q0")
        if typ==0: fill+=epi_qkv(vACC1,vRS1,sST1,sT1,"qkv")
        else:
            fill[-1]=(lambda P: P("buffer_store_dwordx4 %s, v%d, %s, s%d offen sc1"%(vr(vACC0+4,4),vL16,srd(S_WS),sT0),tag="qkv"))
            fill+=epi_gelu(vACC1,16,sST1,"h1")
        main=passB_main(2,32)
        emit(P, merge(main,fill) if cfg.interleave else main+fill)
        P("ds_write_b32 v%d, v%d offset:2048"%(vCSW,vCS0))
        P.wait_lgkm0(); P.wait_vm("qkv"); P.wait_vm("wq")
        P.wait_vm0()
        if typ==0:
            P("s_branch %s"%Lj); P.save_state("pb0")
    P.label(Lj)
    P("s_barrier")
    stamp(P,cfg,3)
    L=P.newlabel("L_nof1"); Ls=P.newlabel("L_gospin"); Lk=P.newlabel("L_gook")
    P("s_cmp_lg_u32 s%d, 0"%sW); P("s_cbranch_scc1 %s"%L)
    P("s_mov_b32 s%d, %d"%(sD,SPIN_MAX))
    P.label(Ls)
    P("v_readfirstlane_b32 s%d, v%d"%(sC,vX0)); P("s_cmp_lg_u32 s%d, 0"%sC); P("s_cbranch_scc1 %s"%Lk)
    P("s_sub_u32 s%d, s%d, 1"%(sD,sD)); P("s_cmp_eq_u32 s%d, 0"%sD); P("s_cbranch_scc1 %s"%Lk)
    P("s_sleep 1")
    P.raw("  global_load_dword v%d, v%d, s[%d:%d] sc1"%(vX0,vWQ,S_DBG,S_DBG+1)); P.raw("  s_waitcnt vmcnt(0)")
    P("s_branch %s"%Ls)
    P.label(Lk)
    P("s_lshl_b32 s%d, s%d, 8"%(sC,sTB)); P("s_lshl_b32 s%d, s%d, 4"%(sD,sG)); P("s_add_u32 s%d, s%d, s%d"%(sC,sC,sD))
    P("s_lshl_b32 s%d, s%d, 2"%(sD,sJ)); P("s_add_u32 s%d, s%d, s%d"%(sC,sC,sD)); P("s_add_u32 s%d, s%d, %d"%(sC,sC,WS_FL+FL_F1))
    P("v_mov_b32 v%d, 1"%vX1)
    P("s_mov_b64 exec, 1")
    P.raw("  buffer_store_dword v%d, v%d, %s, s%d offen sc1"%(vX1,vWQ,srd(S_WS),sC))
    P("s_mov_b64 exec, -1")
    P.label(L)
    P("s_xor_b32 s%d, s%d, s%d"%(sC,sMW,sNW))
    P("v_and_b32 v%d, 15, v%d"%(t,vLANE)); P("v_lshrrev_b32 v%d, 2, v%d"%(t,t)); P("v_lshrrev_b32 v%d, 5, v%d"%(t+1,vLANE))
    P("v_lshl_add_u32 v%d, v%d, 3, v%d"%(t,t+1,t)); P("v_lshlrev_b32 v%d, 5, v%d"%(t,t))
    P("v_and_b32 v%d, 3, v%d"%(t+2,vLANE)); P("v_lshl_add_u32 v%d, v%d, 3, v%d"%(t,t+2,t))
    for i in range(4):
        P("s_xor_b32 s%d, s%d, %d"%(sD,sC,i)); P("s_lshl_b32 s%d, s%d, 9"%(sD,sD)); P("s_add_u32 s%d, s%d, %d"%(sD,sD,LDS_WQ))
        P("v_add_u32 v%d, s%d, v%d"%(vXA+i,sD,t))
    Ln1=P.newlabel("L_passC_nw1"); Lj=P.newlabel("L_passC_done")
    P("s_cmp_eq_u32 s%d, 1"%sNW); P("s_cbranch_scc1 %s"%Ln1)
    P.save_state("pc")
    fill=augw(vT+8,vB1b,vACC2,vCSR,2)+epi_gelu(vACC2,16,sST2,"h2")
    main=passC_reads_L(0)+passC_reads_L(1)
    for ks in range(32):
        if ks+2<32: main+=passC_reads_L(ks+2)
        main+=passC_mfma_L(ks)
    emit(P, merge(main,fill,start=8) if cfg.interleave else main+fill)
    P("ds_write_b32 v%d, v%d offset:3072"%(vCSW,vCS0))
    P.wait_lgkm0()
    P("s_barrier")
    emit(P, augw(vT+8,vB1c,vACC0,vCSR,3)+epi_gelu(vACC0,8,sST3,"hq"))
    P.wait_vm0() if cfg.stop_after=='p1' else None
    P("s_branch %s"%Lj)
    P.label(Ln1); P.restore_state("pc")
    emit(P, augw(vT+8,vB1b,vACC2,vCSR,2)+epi_gelu(vACC2,16,sST2,"h2"))
    P.wait_lgkm0()
    P("s_barrier")
    P.label(Lj)
    stamp(P,cfg,4)

def passB_reads_L(ks):
    q=ks>>2; i=ks&3; b=vWF+4*(ks&3)
    return ["ds_read_b64_tr_b16 %s, v%d offset:%d"%(vr(b,2),vWA+i,q*8192),
            "ds_read_b64_tr_b16 %s, v%d offset:%d"%(vr(b+2,2),vWA+i,q*8192+512)]
def passB_reads(P,ks): emit(P,passB_reads_L(ks))
def passB_mfma_L(ks):
    b=vWF+4*(ks&3); L=["v_mfma_f32_32x32x16_bf16 %s, %s, %s, %s"%(vr(vACC2,16),vr(b,4),X(ks),"0" if ks==0 else vr(vACC2,16))]
    if (ks&3)==0: L.append("v_mfma_f32_16x16x32_bf16 %s, %s, %s, %s"%(vr(vCS0,4),vr(vSEL,4),vr(b,4),"0" if ks==0 else vr(vCS0,4)))
    return L
def passC_reads_L(ks):
    q=ks>>2; i=ks&3; b=vWF+4*(ks&3)
    return ["ds_read_b64_tr_b16 %s, v%d offset:%d"%(vr(b,2),vXA+i,q*2048),
            "ds_read_b64_tr_b16 %s, v%d offset:%d"%(vr(b+2,2),vXA+i,q*2048+128)]
def passC_mfma_L(ks):
    b=vWF+4*(ks&3); L=["v_mfma_f32_32x32x16_bf16 %s, %s, %s, %s"%(vr(vACC0,16),vr(b,4),X(ks),"0" if ks==0 else vr(vACC0,16))]
    if (ks&3)==0: L.append("v_mfma_f32_16x16x32_bf16 %s, %s, %s, %s"%(vr(vCS0,4),vr(vSEL,4),vr(b,4),"0" if ks==0 else vr(vCS0,4)))
    return L


aQ=128; aK=132; aV=140; aS=156; aO=188; aM0=204; aM8=220; aKA=236; aVA=237; aT=242; aL16=252; aPOLL=253; aPA=254
NEG=0xF149F2CA
def setexec(P,nl):
    if nl>=32:
        P("s_mov_b32 exec_lo, %s"%hex((1<<32)-1 if nl>=32 else 0)); P("s_mov_b32 exec_hi, %s"%hex((1<<(nl-32))-1))
    else: P("s_mov_b64 exec, %s"%hex((1<<nl)-1))
def poll(P, areg, dreg, nl, soff, cfg, first=True):
    Ls=P.newlabel("L_spin"); Lk=P.newlabel("L_ok")
    P("s_mov_b32 s%d, %d"%(sT7,SPIN_MAX))
    P.label(Ls)
    setexec(P,nl)
    P("v_cmp_ne_u32 vcc, 1, v%d"%dreg)
    P("s_mov_b64 exec, -1")
    P("s_cbranch_vccz %s"%Lk)
    P("s_sub_u32 s%d, s%d, 1"%(sT7,sT7)); P("s_cmp_eq_u32 s%d, 0"%sT7); P("s_cbranch_scc1 %s"%Lk)
    setexec(P,nl)
    P.raw("  buffer_load_dword v%d, v%d, %s, s%d offen sc1"%(dreg,areg,srd(S_WS),soff))
    P("s_mov_b64 exec, -1")
    P.raw("  s_waitcnt vmcnt(0)")
    P("s_branch %s"%Ls)
    P.label(Lk)
def poll_issue(P, areg, dreg, nl, soff, tag):
    setexec(P,nl)
    P("buffer_load_dword v%d, v%d, %s, s%d offen sc1"%(dreg,areg,srd(S_WS),soff), tag=tag)
    P("s_mov_b64 exec, -1")

def att_indices(P):
    P("s_lshl_b32 s%d, s%d, 2"%(sHD,sXCD)); P("s_and_b32 s%d, s%d, 3"%(sC,sSLOT)); P("s_add_u32 s%d, s%d, s%d"%(sHD,sHD,sC))
    P("s_lshr_b32 s%d, s%d, 2"%(sQB,sSLOT))
def att_f1_addr(P):
    t=aT
    def cg(dst,add):
        P("s_add_u32 s%d, s%d, %d"%(sC,sXCD,add))
        P("s_mul_i32 s%d, s%d, 43"%(sD,sC)); P("s_lshr_b32 s%d, s%d, 8"%(sD,sD))
        P("s_mul_i32 s%d, s%d, 6"%(dst,sD)); P("s_sub_u32 s%d, s%d, s%d"%(sC,sC,dst))
        P("s_lshr_b32 s%d, s%d, 1"%(dst,sC)); P("s_sub_u32 s%d, s%d, 2"%(sT6,sC))
        P("s_cmp_lt_u32 s%d, 4"%sC); P("s_cselect_b32 s%d, s%d, s%d"%(dst,dst,sT6))
        P("s_lshl_b32 s%d, s%d, 2"%(sD,sD)); P("s_add_u32 s%d, s%d, s%d"%(dst,dst,sD))
    cg(sT0,0); cg(sT1,8); cg(sT2,16)
    P("v_mul_u32_u24 v%d, 86, v%d"%(t,vLANE)); P("v_lshrrev_b32 v%d, 8, v%d"%(t,t))
    P("v_mul_u32_u24 v%d, 3, v%d"%(t+1,t)); P("v_sub_u32 v%d, v%d, v%d"%(t+1,vLANE,t+1))
    P("v_mov_b32 v%d, s%d"%(t+2,sT0)); P("v_mov_b32 v%d, s%d"%(t+3,sT1)); P("v_mov_b32 v%d, s%d"%(t+4,sT2))
    P("v_cmp_eq_u32 vcc, 1, v%d"%(t+1)); P("v_cndmask_b32 v%d, v%d, v%d, vcc"%(t+2,t+2,t+3))
    P("v_cmp_eq_u32 vcc, 2, v%d"%(t+1)); P("v_cndmask_b32 v%d, v%d, v%d, vcc"%(t+2,t+2,t+4))
    P("s_lshl_b32 s%d, s%d, 1"%(sC,sQB)); P("s_sub_u32 s%d, s%d, 2"%(sC,sC))
    P("v_add_u32 v%d, s%d, v%d"%(t,sC,t)); P("v_max_i32 v%d, 0, v%d"%(t,t))
    P("v_lshlrev_b32 v%d, 8, v%d"%(t,t)); P("v_lshl_add_u32 v%d, v%d, 2, v%d"%(aPA,t+2,t))
    P("s_mov_b32 s%d, %d"%(sT3,WS_FL+FL_F1))

def att_loads(P):
    t=aT
    P("v_lshlrev_b32 v%d, 4, v%d"%(aL16,vLANE))
    P("s_cmp_lt_u32 s%d, 4"%sW); P("s_cselect_b32 s%d, 0x40000000, 0"%sC)
    P("s_cmp_eq_u32 s%d, 0"%sQB); P("s_cselect_b32 s%d, s%d, 0"%(sC,sC))
    P("v_add_u32 v%d, s%d, v%d"%(t,sC,aL16))
    P("s_lshl_b32 s%d, s%d, 3"%(sC,sQB)); P("s_lshl_b32 s%d, s%d, 1"%(sD,sW)); P("s_add_u32 s%d, s%d, s%d"%(sC,sC,sD)); P("s_sub_u32 s%d, s%d, 8"%(sC,sC))
    P("s_add_u32 s%d, s%d, 32"%(sD,sHD)); P("s_lshl_b32 s%d, s%d, 6"%(sD,sD)); P("s_add_u32 s%d, s%d, s%d"%(sD,sD,sC)); P("s_lshl_b32 s%d, s%d, 10"%(sD,sD))
    P("s_add_u32 s%d, s%d, %d"%(sT0,sD,32*64*1024))
    P("s_lshl_b32 s%d, s%d, 11"%(sT1,sW))
    P("s_add_u32 m0, s%d, %d"%(sT1,LDS_K))
    P("buffer_load_dwordx4 v%d, %s, s%d offen sc1 lds"%(t,srd(S_WS),sD))
    P("buffer_load_dwordx4 v%d, %s, s%d offen offset:1024 sc1 lds"%(t,srd(S_WS),sD))
    P("s_mul_i32 s%d, s%d, %d"%(sT1,sW,2*VSTRIDE))
    P("s_add_u32 m0, s%d, %d"%(sT1,LDS_V))
    P("buffer_load_dwordx4 v%d, %s, s%d offen sc1 lds"%(t,srd(S_WS),sT0))
    P("s_add_u32 m0, s%d, %d"%(sT1,LDS_V+VSTRIDE)); P("s_add_u32 s%d, s%d, 1024"%(sT0,sT0))
    P("buffer_load_dwordx4 v%d, %s, s%d offen sc1 lds"%(t,srd(S_WS),sT0))
    P("s_lshl_b32 s%d, s%d, 6"%(sC,sHD)); P("s_lshl_b32 s%d, s%d, 3"%(sD,sQB)); P("s_add_u32 s%d, s%d, s%d"%(sC,sC,sD)); P("s_add_u32 s%d, s%d, s%d"%(sC,sC,sW)); P("s_lshl_b32 s%d, s%d, 10"%(sC,sC))
    P("buffer_load_dwordx4 %s, v%d, %s, s%d offen sc1"%(vr(aQ,4),aL16,srd(S_WS),sC), tag="kvq")

def att_setup(P):
    t=aT
    P("v_lshrrev_b32 v%d, 2, v%d"%(t,vLANE)); P("v_and_b32 v%d, 3, v%d"%(t+1,vLANE))
    P("v_mul_u32_u24 v%d, %d, v%d"%(t+2,VSTRIDE,t)); P("v_lshl_add_u32 v%d, v%d, 3, v%d"%(t+2,t+1,t+2)); P("v_add_u32 v%d, %d, v%d"%(t+2,LDS_V+1024,t+2))
    P("s_cmp_eq_u32 s%d, 0"%sQB); P("s_cselect_b32 s%d, 8, 0"%sC)
    P("v_cmp_le_u32 vcc, s%d, v%d"%(sC,t))
    P("v_mov_b32 v%d, 0x3f80"%(t+4)); P("v_cndmask_b32 v%d, 0, v%d, vcc"%(t+4,t+4))
    P("v_cmp_gt_u32 vcc, 2, v%d"%(t+1)); P("v_cndmask_b32 v%d, 0, v%d, vcc"%(t+4,t+4)); P("v_mov_b32 v%d, 0"%(t+5))
    P("ds_write_b64 v%d, %s"%(t+2,vr(t+4,2)))
    P("s_lshl_b32 s%d, s%d, 10"%(sC,sW)); P("s_add_u32 s%d, s%d, %d"%(sC,sC,LDS_K)); P("v_add_u32 v%d, s%d, v%d"%(aKA,sC,aL16))
    P("v_and_b32 v%d, 15, v%d"%(t,vLANE)); P("v_lshrrev_b32 v%d, 2, v%d"%(t,t))
    P("v_and_b32 v%d, 3, v%d"%(t+1,vLANE))
    P("v_lshrrev_b32 v%d, 5, v%d"%(t+2,vLANE))
    P("v_lshl_add_u32 v%d, v%d, 2, v%d"%(t+3,t+2,t)); P("v_lshlrev_b32 v%d, 4, v%d"%(t+3,t+3))
    P("v_and_b32 v%d, 1, v%d"%(t+4,t+1)); P("v_lshl_add_u32 v%d, v%d, 9, v%d"%(t+3,t+4,t+3))
    P("v_lshrrev_b32 v%d, 1, v%d"%(t+4,t+1)); P("v_lshl_add_u32 v%d, v%d, 3, v%d"%(t+3,t+4,t+3))
    P("v_lshlrev_b32 v%d, 3, v%d"%(t+4,t+1)); P("v_add_u32 v%d, 1024, v%d"%(t+4,t+4))
    P("s_mul_i32 s%d, s%d, %d"%(sC,sW,VSTRIDE)); P("s_add_u32 s%d, s%d, %d"%(sC,sC,LDS_V))
    P("v_lshrrev_b32 v%d, 4, v%d"%(t+5,vLANE)); P("v_and_b32 v%d, 1, v%d"%(t+5,t+5)); P("v_cmp_eq_u32 vcc, 1, v%d"%(t+5))
    for k in range(4):
        P("v_add_u32 v%d, %d, v%d"%(t+6,(k>>1)*256+(k&1)*128,t+3))
        P("v_cndmask_b32 v%d, v%d, v%d, vcc"%(t+6,t+6,t+4))
        P("v_add_u32 v%d, s%d, v%d"%(aVA+k,sC,t+6))
    P("v_and_b32 v%d, 31, v%d"%(t,vLANE)); P("v_lshlrev_b32 v%d, 2, v%d"%(t+2,t+2)); P("v_sub_u32 v%d, v%d, v%d"%(t,t,t+2))
    P("v_mov_b32 v%d, %s"%(t+1,hx(NEG)))
    for v in range(16):
        cv=8*(v//4)+v%4
        P("v_cmp_gt_i32 vcc, %d, v%d"%(cv,t))
        P("v_cndmask_b32 v%d, v%d, 0, vcc"%(aM0+v,t+1))
        P("v_cndmask_b32 v%d, 0, v%d, vcc"%(aM8+v,t+1))

def att_kread(j): return ["ds_read_b128 %s, v%d offset:%d"%(vr(aK+4*(j&1),4),aKA,j*1024)]
def att_vread(j):
    b=aV+8*(j&1)
    return ["ds_read_b64_tr_b16 %s, v%d offset:%d"%(vr(b+2*k,2),aVA+k,j*VSTRIDE) for k in range(4)]
def att_qk(j):
    C="0"
    if j==0: C=vr(aM0,16)
    if j==8: C=vr(aM8,16)
    return ["v_mfma_f32_32x32x16_bf16 %s, %s, %s, %s"%(vr(aS+16*(j&1),16),vr(aK+4*(j&1),4),vr(aQ,4),C)]
def att_main(P,cfg,hooks={}):
    emit(P,att_kread(0)+att_kread(1)+att_vread(0)+att_qk(0))
    for j in range(9):
        S=aS+16*(j&1); b=aV+8*(j&1)
        if j<8: emit(P,att_qk(j+1))
        if j<7: emit(P,att_kread(j+2))
        if j<8: emit(P,att_vread(j+1))
        for v in range(8): P("v_exp_f32 v%d, v%d"%(S+v,S+v))
        for k in range(4):
            P("v_cvt_pk_bf16_f32 v%d, v%d, v%d"%(S+k,S+2*k,S+2*k+1))
        for v in range(8,12): P("v_exp_f32 v%d, v%d"%(S+v,S+v))
        P("v_mfma_f32_32x32x16_bf16 %s, %s, %s, %s"%(vr(aO,16),vr(b,4),vr(S,4),"0" if j==0 else vr(aO,16)))
        for v in range(12,16): P("v_exp_f32 v%d, v%d"%(S+v,S+v))
        for k in range(4,8): P("v_cvt_pk_bf16_f32 v%d, v%d, v%d"%(S+k,S+2*k,S+2*k+1))
        P("v_mfma_f32_32x32x16_bf16 %s, %s, %s, %s"%(vr(aO,16),vr(b+4,4),vr(S+4,4),vr(aO,16)))
        if j in hooks: hooks[j](P)

def att_fallback(P):
    t=aT; R=P.raw
    L1=P.newlabel("L_fb1"); L2=P.newlabel("L_fb2")
    def qk_masked(lab):
        R("  ds_read_b128 %s, v%d"%(vr(aK,4),t)); R("  s_waitcnt lgkmcnt(0)")
        La=P.newlabel(lab+"a"); Lb=P.newlabel(lab+"b"); Lc=P.newlabel(lab+"c")
        R("  s_cmp_eq_u32 s%d, 0"%sT0); R("  s_cbranch_scc1 %s"%La)
        R("  s_cmp_eq_u32 s%d, 8"%sT0); R("  s_cbranch_scc1 %s"%Lb)
        R("  v_mfma_f32_32x32x16_bf16 %s, %s, %s, 0"%(vr(aS,16),vr(aK,4),vr(aQ,4))); R("  s_branch %s"%Lc)
        R("%s:"%La); R("  v_mfma_f32_32x32x16_bf16 %s, %s, %s, %s"%(vr(aS,16),vr(aK,4),vr(aQ,4),vr(aM0,16))); R("  s_branch %s"%Lc)
        R("%s:"%Lb); R("  v_mfma_f32_32x32x16_bf16 %s, %s, %s, %s"%(vr(aS,16),vr(aK,4),vr(aQ,4),vr(aM8,16)))
        R("%s:"%Lc); R("  s_nop 15")
    R("  s_sub_u32 s%d, 8, s%d"%(sT1,sW)); R("  s_cmp_eq_u32 s%d, 0"%sQB); R("  s_cselect_b32 s%d, s%d, 0"%(sT1,sT1))
    R("  s_mov_b32 s%d, s%d"%(sT0,sT1))
    R("  s_lshl_b32 s%d, s%d, 10"%(sT2,sT0)); R("  v_add_u32 v%d, s%d, v%d"%(t,sT2,aKA))
    R("  v_mov_b32 v%d, %s"%(t+1,hx(NEG)))
    R("%s:"%L1)
    qk_masked("L_fq1")
    for v in range(0,16,2): R("  v_max3_f32 v%d, v%d, v%d, v%d"%(t+1,aS+v,aS+v+1,t+1))
    R("  v_add_u32 v%d, 1024, v%d"%(t,t))
    R("  s_add_u32 s%d, s%d, 1"%(sT0,sT0)); R("  s_cmp_lt_u32 s%d, 9"%sT0); R("  s_cbranch_scc1 %s"%L1)
    R("  v_mov_b32 v%d, v%d"%(t+2,t+1)); R("  s_nop 1"); R("  v_permlane32_swap_b32 v%d, v%d"%(t+1,t+2)); R("  s_nop 1")
    R("  v_max_f32 v%d, v%d, v%d"%(t+1,t+1,t+2))
    for v in range(16): R("  v_mov_b32 v%d, 0"%(aO+v))
    R("  s_mov_b32 s%d, s%d"%(sT0,sT1))
    R("  s_lshl_b32 s%d, s%d, 10"%(sT2,sT0)); R("  v_add_u32 v%d, s%d, v%d"%(t,sT2,aKA))
    R("  s_mul_i32 s%d, s%d, %d"%(sT2,sT0,VSTRIDE))
    for k in range(4): R("  v_add_u32 v%d, s%d, v%d"%(t+3+k,sT2,aVA+k))
    R("%s:"%L2)
    qk_masked("L_fq2")
    for k in range(4): R("  ds_read_b64_tr_b16 %s, v%d"%(vr(aV+2*k,2),t+3+k))
    for v in range(16): R("  v_sub_f32 v%d, v%d, v%d"%(aS+v,aS+v,t+1))
    for v in range(16): R("  v_exp_f32 v%d, v%d"%(aS+v,aS+v))
    R("  s_nop 1")
    for k in range(8): R("  v_cvt_pk_bf16_f32 v%d, v%d, v%d"%(aS+k,aS+2*k,aS+2*k+1))
    R("  s_waitcnt lgkmcnt(0)"); R("  s_nop 1")
    R("  v_mfma_f32_32x32x16_bf16 %s, %s, %s, %s"%(vr(aO,16),vr(aV,4),vr(aS,4),vr(aO,16)))
    R("  v_mfma_f32_32x32x16_bf16 %s, %s, %s, %s"%(vr(aO,16),vr(aV+4,4),vr(aS+4,4),vr(aO,16)))
    R("  v_add_u32 v%d, 1024, v%d"%(t,t))
    for k in range(4): R("  v_add_u32 v%d, %d, v%d"%(t+3+k,VSTRIDE,t+3+k))
    R("  s_add_u32 s%d, s%d, 1"%(sT0,sT0)); R("  s_cmp_lt_u32 s%d, 9"%sT0); R("  s_cbranch_scc1 %s"%L2)
    R("  s_nop 15")

def att(P,cfg):
    t=aT
    att_indices(P)
    att_f1_addr(P)
    poll_issue(P,aPA,aPOLL,12,sT3,"f1")
    att_setup_pre=None
    P.wait_vm("f1")
    poll(P,aPA,aPOLL,12,sT3,cfg)
    stamp(P,cfg,5)
    att_loads(P)
    att_setup(P)
    P.wait_lgkm0(); P.wait_vm("kvq")
    P("s_barrier")
    stamp(P,cfg,6)
    L=P.newlabel("L_nof2")
    P("s_cmp_lg_u32 s%d, 0"%sW); P("s_cbranch_scc1 %s"%L)
    P("s_lshl_b32 s%d, s%d, 8"%(sC,sTB)); P("s_lshl_b32 s%d, s%d, 4"%(sD,sG)); P("s_add_u32 s%d, s%d, s%d"%(sC,sC,sD))
    P("s_lshl_b32 s%d, s%d, 2"%(sD,sJ)); P("s_add_u32 s%d, s%d, s%d"%(sC,sC,sD)); P("s_add_u32 s%d, s%d, %d"%(sC,sC,WS_FL+FL_F2))
    P("v_mov_b32 v%d, 1"%t); P("v_mov_b32 v%d, 0"%(t+1))
    P("s_mov_b64 exec, 1")
    P.raw("  buffer_store_dword v%d, v%d, %s, s%d offen sc1"%(t,t+1,srd(S_WS),sC))
    P("s_mov_b64 exec, -1")
    P.label(L)
    hooks={}
    if cfg.stop_after is None: hooks=g2_att_hooks(cfg)
    att_main(P,cfg,hooks)
    Lok=P.newlabel("L_attok")
    P("v_cmp_gt_f32 vcc, v%d, %s"%(aO+8,"v%d"%t)) if False else None
    P("v_mov_b32 v%d, %s"%(t,hx(f32(2.0**-30)))); P("v_mov_b32 v%d, %s"%(t+1,hx(f32(2.0**30))))
    P("v_cmp_gt_f32 vcc, v%d, v%d"%(aO+8,t)); P("v_cmp_lt_f32 s[%d:%d], v%d, v%d"%(sT0,sT1,aO+8,t+1))
    P("s_and_b64 vcc, vcc, s[%d:%d]"%(sT0,sT1)); P("s_cmp_eq_u64 vcc, -1")
    if getattr(cfg,'force_fallback',False): P("s_cmp_eq_u32 0, 1")
    P("s_cbranch_scc1 %s"%Lok)
    P.fence()
    att_fallback(P)
    P.label(Lok)
    P("v_rcp_f32 v%d, v%d"%(t,aO+8))
    for v in range(8): P("v_mul_f32 v%d, v%d, v%d"%(aO+v,aO+v,t))
    for k in range(4): P("v_cvt_pk_bf16_f32 v%d, v%d, v%d"%(aO+k,aO+2*k,aO+2*k+1))
    P("s_lshl_b32 s%d, s%d, 3"%(sC,sQB)); P("s_add_u32 s%d, s%d, s%d"%(sC,sC,sW)); P("s_lshl_b32 s%d, s%d, 5"%(sC,sC)); P("s_add_u32 s%d, s%d, s%d"%(sC,sC,sHD))
    P("s_lshl_b32 s%d, s%d, 10"%(sC,sC)); P("s_add_u32 s%d, s%d, %d"%(sC,sC,WS_O))
    P("buffer_store_dwordx4 %s, v%d, %s, s%d offen sc1"%(vr(aO,4),aL16,srd(S_WS),sC), tag="o")
    stamp(P,cfg,7)

gWB=60; gWOB=61; gHB=62; gOB=63; gW2K=64; gFL=65
gWV=18
gHA=2; gWA=3; gHF=20; gWF=28; gG=36; gS=52; gB2=68; gX=72; gPA=76; gPOLL=77; gXA=78; gT=82; gL16=252
LDS_XG=0; LDS_XS=16384; LDS_PT=32768; PTP=144
def g2_indices(P):
    t=vT
    P("s_lshl_b32 s%d, s%d, 2"%(sT2B,sXCD)); P("s_lshr_b32 s%d, s%d, 3"%(sC,sSLOT)); P("s_add_u32 s%d, s%d, s%d"%(sT2B,sT2B,sC))
    P("s_and_b32 s%d, s%d, 7"%(sC2,sSLOT))
    P("s_lshr_b32 s%d, s%d, 2"%(sC,sW))
    P("s_lshl_b32 s%d, s%d, 7"%(sD,sC2))
    P("s_mul_i32 s%d, s%d, %d"%(gWB,sC,896*1024)); P("s_add_u32 s%d, s%d, s%d"%(gWB,gWB,sD))
    P("s_mul_i32 s%d, s%d, %d"%(gWOB,sC,256*1024)); P("s_add_u32 s%d, s%d, s%d"%(gWOB,gWOB,sD))
    P("s_lshr_b32 s%d, s%d, 1"%(sD,sW)); P("s_and_b32 s%d, s%d, 1"%(sD,sD)); P("s_lshl_b32 s%d, s%d, 1"%(gHB,sT2B)); P("s_add_u32 s%d, s%d, s%d"%(sD,sD,gHB))
    P("s_and_b32 s%d, s%d, 1"%(gW2K,sW)); P("s_lshl_b32 s%d, s%d, 1"%(gW2K,gW2K))
    P("s_mul_i32 s%d, s%d, 112"%(gHB,sD)); P("s_add_u32 s%d, s%d, s%d"%(gHB,gHB,gW2K))
    P("s_mul_i32 s%d, s%d, 56"%(gOB,sC)); P("s_add_u32 s%d, s%d, s%d"%(gHB,gHB,gOB)); P("s_lshl_b32 s%d, s%d, 10"%(gHB,gHB)); P("s_add_u32 s%d, s%d, %d"%(gHB,gHB,WS_H))
    P("s_lshl_b32 s%d, s%d, 5"%(gOB,sD)); P("s_add_u32 s%d, s%d, s%d"%(gOB,gOB,gW2K)); P("s_lshl_b32 s%d, s%d, 4"%(sC,sC)); P("s_add_u32 s%d, s%d, s%d"%(gOB,gOB,sC))
    P("s_lshl_b32 s%d, s%d, 10"%(gOB,gOB)); P("s_add_u32 s%d, s%d, %d"%(gOB,gOB,WS_O))
    P("s_lshl_b32 s%d, s%d, 11"%(gW2K,sW))
    P("v_lshrrev_b32 v%d, 3, v%d"%(t,vLANE)); P("v_and_b32 v%d, 7, v%d"%(t+1,vLANE))
    P("v_lshrrev_b32 v%d, 1, v%d"%(t+2,t)); P("v_and_b32 v%d, 1, v%d"%(t+2,t+2)); P("v_lshlrev_b32 v%d, 2, v%d"%(t+2,t+2))
    P("v_xor_b32 v%d, v%d, v%d"%(t+1,t+1,t+2)); P("v_lshlrev_b32 v%d, 4, v%d"%(t+1,t+1))
    P("s_and_b32 s%d, s%d, 3"%(sC,sW)); P("s_lshl_b32 s%d, s%d, 4"%(sC,sC)); P("v_add_u32 v%d, s%d, v%d"%(t,sC,t))
    P("v_lshl_add_u32 v%d, v%d, 10, v%d"%(gWV,t,t+1))
def g2_dma_w(P,st):
    slot=LDS_WR+(st&3)*16384
    for p in range(2):
        P("s_add_u32 m0, s%d, %d"%(gW2K,slot+p*1024))
        if st<14:
            P("s_add_u32 s%d, s%d, %d"%(sC,gWB,(64*st+8*p)*1024))
            P("buffer_load_dwordx4 v%d, %s, s%d offen lds"%(gWV,srd(S_W2),sC), tag="W%d"%st)
        else:
            P("s_add_u32 s%d, s%d, %d"%(sC,gWOB,(64*(st-14)+8*p)*1024))
            P("buffer_load_dwordx4 v%d, %s, s%d offen lds"%(gWV,srd(S_WO),sC), tag="W%d"%st)
def g2_dma_h(P,st):
    slot=LDS_HR+(st%3)*16384
    P("s_add_u32 m0, s%d, %d"%(gW2K,slot))
    if st<14: P("s_add_u32 s%d, s%d, %d"%(sC,gHB,st*4096))
    else: P("s_add_u32 s%d, s%d, %d"%(sC,gOB,(st-14)*4096))
    P("buffer_load_dwordx4 v%d, %s, s%d offen sc1 lds"%(gL16,srd(S_WS),sC))
    P("buffer_load_dwordx4 v%d, %s, s%d offen offset:1024 sc1 lds"%(gL16,srd(S_WS),sC), tag="H%d"%st)
def g2_dma_w_prefetch(P):
    g2_indices(P)
    for st in range(4): g2_dma_w(P,st)
def g2_att_hooks(cfg):
    def h2(P):
        P("v_lshlrev_b32 v%d, 2, v%d"%(aPA,vLANE))
        P("s_lshr_b32 s%d, s%d, 1"%(sC,sT2B)); P("s_lshl_b32 s%d, s%d, 8"%(sC,sC)); P("s_add_u32 s%d, s%d, %d"%(gFL,sC,WS_FL+FL_F2))
        poll_issue(P,aPA,aPOLL,16,gFL,"f2")
    def h5(P):
        P.wait_vm("f2"); poll(P,aPA,aPOLL,16,gFL,cfg)
        for st in range(3): g2_dma_h(P,st)
    return {2:h2,5:h5}
def g2_reads(st,i):
    b=4*(i&1)
    return ["ds_read_b128 %s, v%d offset:%d"%(vr(gHF+b,4),gHA,(st%3)*16384+i*1024),
            "ds_read_b64_tr_b16 %s, v%d offset:%d"%(vr(gWF+b,2),gWA,(st&3)*16384+i*2048),
            "ds_read_b64_tr_b16 %s, v%d offset:%d"%(vr(gWF+b+2,2),gWA,(st&3)*16384+i*2048+1024)]
def g2_mfma(st,i):
    b=4*(i&1); acc=gG if st<14 else gS
    first=(st in (0,14) and i==0)
    return ["v_mfma_f32_32x32x16_bf16 %s, %s, %s, %s"%(vr(acc,16),vr(gWF+b,4),vr(gHF+b,4),"0" if first else vr(acc,16))]
def g2_xchg_write(P,acc,base):
    La=P.newlabel("L_xa"); Lb=P.newlabel("L_xb")
    P("s_cmp_ge_u32 s%d, 4"%sW); P("s_cbranch_scc1 %s"%La)
    P.save_state("x")
    P("ds_write_b128 v%d, %s offset:%d"%(gXA,vr(acc+8,4),base)); P("ds_write_b128 v%d, %s offset:%d"%(gXA,vr(acc+12,4),base+1024))
    P.wait_lgkm0()
    P("s_branch %s"%Lb)
    P.label(La); P.restore_state("x")
    P("ds_write_b128 v%d, %s offset:%d"%(gXA,vr(acc,4),base)); P("ds_write_b128 v%d, %s offset:%d"%(gXA,vr(acc+4,4),base+1024))
    P.wait_lgkm0()
    for v in range(8): P("v_mov_b32 v%d, v%d"%(acc+v,acc+8+v))
    P.label(Lb)
def g2(P,cfg):
    t=gT
    P("s_and_b32 s%d, s%d, 1"%(sC,sW)); P("s_lshl_b32 s%d, s%d, 12"%(sC,sC))
    P("s_lshr_b32 s%d, s%d, 2"%(sD,sW)); P("s_lshl_b32 s%d, s%d, 13"%(sD,sD))
    P("s_add_u32 s%d, s%d, s%d"%(sC,sC,sD)); P("s_add_u32 s%d, s%d, %d"%(sC,sC,LDS_HR))
    P("v_add_u32 v%d, s%d, v%d"%(gHA,sC,gL16))
    P("v_and_b32 v%d, 15, v%d"%(t,vLANE)); P("v_lshrrev_b32 v%d, 2, v%d"%(t,t))
    P("v_and_b32 v%d, 3, v%d"%(t+1,vLANE))
    P("v_lshrrev_b32 v%d, 4, v%d"%(t+2,vLANE)); P("v_and_b32 v%d, 1, v%d"%(t+2,t+2)); P("v_lshlrev_b32 v%d, 1, v%d"%(t+2,t+2))
    P("v_lshrrev_b32 v%d, 1, v%d"%(t+3,t+1)); P("v_add_u32 v%d, v%d, v%d"%(t+2,t+2,t+3))
    P("s_lshr_b32 s%d, s%d, 1"%(sC,sW)); P("s_and_b32 s%d, s%d, 1"%(sC,sC)); P("s_lshl_b32 s%d, s%d, 2"%(sT0,sC))
    P("v_add_u32 v%d, s%d, v%d"%(t+2,sT0,t+2))
    P("v_lshrrev_b32 v%d, 1, v%d"%(t+3,t)); P("v_lshlrev_b32 v%d, 2, v%d"%(t+3,t+3)); P("v_xor_b32 v%d, v%d, v%d"%(t+2,t+2,t+3))
    P("v_lshlrev_b32 v%d, 4, v%d"%(t+2,t+2)); P("v_and_b32 v%d, 1, v%d"%(t+3,t+1)); P("v_lshl_add_u32 v%d, v%d, 3, v%d"%(t+2,t+3,t+2))
    P("v_lshrrev_b32 v%d, 5, v%d"%(t+4,vLANE))
    P("v_lshl_add_u32 v%d, v%d, 2, v%d"%(t+3,t+4,t)); P("v_lshl_add_u32 v%d, v%d, 7, v%d"%(t+2,t+3,t+2))
    P("s_add_u32 s%d, s%d, %d"%(sD,sD,LDS_WR)); P("v_add_u32 v%d, s%d, v%d"%(gWA,sD,t+2))
    P("v_add_u32 v%d, s%d, v%d"%(gXA,gW2K,gL16))
    P("s_xor_b32 s%d, s%d, 8192"%(sD,gW2K)); P("v_add_u32 v%d, s%d, v%d"%(gXA+1,sD,gL16))
    P("s_lshl_b32 s%d, s%d, 6"%(sD,sC2)); P("s_lshl_b32 s%d, s%d, 5"%(sC,sC)); P("s_add_u32 s%d, s%d, s%d"%(sD,sD,sC))
    P("s_lshr_b32 s%d, s%d, 2"%(sC,sW)); P("s_lshl_b32 s%d, s%d, 4"%(sC,sC)); P("s_add_u32 s%d, s%d, s%d"%(sD,sD,sC))
    P("v_lshlrev_b32 v%d, 2, v%d"%(t+3,t+4)); P("v_add_u32 v%d, s%d, v%d"%(t+3,sD,t+3)); P("v_lshlrev_b32 v%d, 1, v%d"%(t+3,t+3))
    P.wait_vm("H0")
    P("s_barrier")
    stamp(P,cfg,8)
    P("global_load_dwordx2 %s, v%d, s[%d:%d]"%(vr(gB2,2),t+3,S_B2,S_B2+1))
    P("global_load_dwordx2 %s, v%d, s[%d:%d] offset:16"%(vr(gB2+2,2),t+3,S_B2,S_B2+1))
    P("v_lshrrev_b32 v%d, 3, v%d"%(t,vLANE)); P("s_lshl_b32 s%d, s%d, 3"%(sC,sW)); P("v_add_u32 v%d, s%d, v%d"%(t,sC,t)); P("v_lshlrev_b32 v%d, 10, v%d"%(t,t))
    P("v_and_b32 v%d, 7, v%d"%(t+1,vLANE)); P("v_lshl_add_u32 v%d, v%d, 4, v%d"%(gXA+1+1,t+1,t))
    P("s_lshl_b32 s%d, s%d, 16"%(sT1,sT2B)); P("s_lshl_b32 s%d, s%d, 7"%(sC,sC2)); P("s_add_u32 s%d, s%d, s%d"%(sT1,sT1,sC))
    P("buffer_load_dwordx4 %s, v%d, %s, s%d offen"%(vr(gX,4),gXA+2,srd(S_X),sT1))
    emit(P,g2_reads(0,0))
    for st in range(18):
        for i in range(3):
            emit(P,g2_reads(st,i+1)); emit(P,g2_mfma(st,i))
        P.wait_lgkm0()
        if st<17:
            P.wait_vm("H%d"%(st+1)); P.wait_vm("W%d"%(st+1))
            if st==1: P.wait_vm("o")
            P("s_barrier")
            if st==1:
                L=P.newlabel("L_nof3")
                P("s_cmp_lg_u32 s%d, 0"%sW); P("s_cbranch_scc1 %s"%L)
                P("s_lshl_b32 s%d, s%d, 8"%(sC,sQB)); P("s_lshl_b32 s%d, s%d, 2"%(sD,sHD)); P("s_add_u32 s%d, s%d, s%d"%(sC,sC,sD)); P("s_add_u32 s%d, s%d, %d"%(sC,sC,WS_FL+FL_F3))
                P("v_mov_b32 v%d, 1"%t); P("v_mov_b32 v%d, 0"%(t+1))
                P("s_mov_b64 exec, 1")
                P.raw("  buffer_store_dword v%d, v%d, %s, s%d offen sc1"%(t,t+1,srd(S_WS),sC))
                P("s_mov_b64 exec, -1")
                P.label(L)
            if st==8:
                P("v_lshlrev_b32 v%d, 2, v%d"%(gPA,vLANE))
                P("s_lshr_b32 s%d, s%d, 2"%(sC,sT2B)); P("s_lshl_b32 s%d, s%d, 8"%(sC,sC)); P("s_add_u32 s%d, s%d, %d"%(gFL,sC,WS_FL+FL_F3))
                poll_issue(P,gPA,gPOLL,32,gFL,"f3")
            if st==11:
                P.wait_vm("f3"); poll(P,gPA,gPOLL,32,gFL,cfg)
            if st+3<18: g2_dma_h(P,st+3)
            if st+4<18: g2_dma_w(P,st+4)
            emit(P,g2_reads(st+1,0))
        emit(P,g2_mfma(st,3))
        if st==13:
            g2_xchg_write(P,gG,LDS_XG)
        if st==14:
            pass
    stamp(P,cfg,9)
    P("ds_read_b128 %s, v%d offset:%d"%(vr(t,4),gXA+1,LDS_XG)); P("ds_read_b128 %s, v%d offset:%d"%(vr(t+4,4),gXA+1,LDS_XG+1024))
    g2_xchg_write(P,gS,LDS_XS)
    for v in range(8): P("v_add_f32 v%d, v%d, v%d"%(gG+v,gG+v,t+v))
    P("s_barrier")
    P("ds_read_b128 %s, v%d offset:%d"%(vr(t,4),gXA+1,LDS_XS)); P("ds_read_b128 %s, v%d offset:%d"%(vr(t+4,4),gXA+1,LDS_XS+1024))
    u=t+8
    for k in range(4):
        P("v_lshlrev_b32 v%d, 16, v%d"%(u+2*k,gB2+k)); P("v_and_b32 v%d, s%d, v%d"%(u+2*k+1,sMASKHI,gB2+k))
    for v in range(8): P("v_add_f32 v%d, v%d, v%d"%(gG+v,gG+v,u+v))
    for v in range(8): P("v_mul_f32 v%d, %s, v%d"%(u+v,hx(f32(-1.4426950408889634)),gG+v))
    for v in range(8): P("v_exp_f32 v%d, v%d"%(u+v,u+v))
    for v in range(8): P("v_add_f32 v%d, 1.0, v%d"%(u+v,u+v))
    for v in range(8): P("v_rcp_f32 v%d, v%d"%(u+v,u+v))
    for v in range(8): P("v_mul_f32 v%d, v%d, v%d"%(gG+v,gG+v,u+v))
    for v in range(8): P("v_add_f32 v%d, v%d, v%d"%(gS+v,gS+v,t+v))
    for v in range(8): P("v_mul_f32 v%d, v%d, v%d"%(gS+v,gS+v,gG+v))
    for k in range(4): P("v_cvt_pk_bf16_f32 v%d, v%d, v%d"%(gS+k,gS+2*k,gS+2*k+1))
    P("v_and_b32 v%d, 31, v%d"%(t,vLANE)); P("s_and_b32 s%d, s%d, 1"%(sC,sW)); P("s_lshl_b32 s%d, s%d, 5"%(sC,sC)); P("v_add_u32 v%d, s%d, v%d"%(t,sC,t))
    P("v_mul_u32_u24 v%d, %d, v%d"%(t,PTP,t))
    P("s_lshr_b32 s%d, s%d, 1"%(sC,sW)); P("s_and_b32 s%d, s%d, 1"%(sC,sC)); P("s_lshl_b32 s%d, s%d, 6"%(sC,sC))
    P("s_lshr_b32 s%d, s%d, 2"%(sD,sW)); P("s_lshl_b32 s%d, s%d, 5"%(sD,sD)); P("s_add_u32 s%d, s%d, s%d"%(sC,sC,sD)); P("s_add_u32 s%d, s%d, %d"%(sC,sC,LDS_PT))
    P("v_lshrrev_b32 v%d, 5, v%d"%(t+1,vLANE)); P("v_lshl_add_u32 v%d, v%d, 3, v%d"%(t,t+1,t)); P("v_add_u32 v%d, s%d, v%d"%(t,sC,t))
    P("ds_write_b64 v%d, %s"%(t,vr(gS,2))); P("ds_write_b64 v%d, %s offset:16"%(t,vr(gS+2,2)))
    P("v_lshrrev_b32 v%d, 3, v%d"%(t+2,vLANE)); P("s_lshl_b32 s%d, s%d, 3"%(sC,sW)); P("v_add_u32 v%d, s%d, v%d"%(t+2,sC,t+2)); P("v_mul_u32_u24 v%d, %d, v%d"%(t+2,PTP,t+2))
    P("v_and_b32 v%d, 7, v%d"%(t+3,vLANE)); P("v_lshl_add_u32 v%d, v%d, 4, v%d"%(t+2,t+3,t+2)); P("v_add_u32 v%d, %d, v%d"%(t+2,LDS_PT,t+2))
    P.wait_lgkm0()
    P("s_barrier")
    P("ds_read_b128 %s, v%d"%(vr(t+4,4),t+2))
    for k in range(4):
        P("v_lshlrev_b32 v%d, 16, v%d"%(u+2*k,gX+k)); P("v_and_b32 v%d, s%d, v%d"%(u+2*k+1,sMASKHI,gX+k))
    for k in range(4):
        P("v_lshlrev_b32 v%d, 16, v%d"%(gG+2*k,t+4+k)); P("v_and_b32 v%d, s%d, v%d"%(gG+2*k+1,sMASKHI,t+4+k))
    for v in range(8): P("v_add_f32 v%d, v%d, v%d"%(u+v,u+v,gG+v))
    for k in range(4): P("v_cvt_pk_bf16_f32 v%d, v%d, v%d"%(u+k,u+2*k,u+2*k+1))
    P("buffer_store_dwordx4 %s, v%d, %s, s%d offen"%(vr(u,4),gXA+2,srd(S_OUT),sT1))
    stamp(P,cfg,10)

def build(cfg):
    P=Prog()
    setup(P,cfg)
    p1(P,cfg)
    if cfg.stop_after!='p1': att(P,cfg)
    if cfg.stop_after is None: g2(P,cfg)
    stamp_flush(P,cfg)
    P.wait_vm0()
    P.label("L_end")
    P("s_endpgm")
    body=P.finalize()
    hdr=open("recurrent_scan__sliding_block__mixer_channel_mlp__prompt.s.ref").read().split("; Override")[0]
    s=hdr+"; Generated by my own generator script (work/gen.py).\n"
    s+="; @launch grid=(256,1,1) block=(512,1,1) lds=%d\n"%LDS_TOTAL
    s+='.amdgcn_target "amdgcn-amd-amdhsa--gfx950"\n.text\n.globl %s\n.p2align 8\n.type %s,@function\n%s:\n'%(KNAME,KNAME,KNAME)
    s+=body
    s+='.section .rodata,"a"\n.p2align 6\n.amdhsa_kernel %s\n  .amdhsa_next_free_vgpr 256\n  .amdhsa_next_free_sgpr 102\n  .amdhsa_accum_offset 256\n  .amdhsa_group_segment_fixed_size 0\n  .amdhsa_kernarg_size 88\n  .amdhsa_user_sgpr_count 2\n  .amdhsa_user_sgpr_kernarg_segment_ptr 1\n  .amdhsa_system_sgpr_workgroup_id_x 1\n.end_amdhsa_kernel\n'%KNAME
    return s,P.stats

if __name__=="__main__":
    cfg=Cfg()
    out=sys.argv[1] if len(sys.argv)>1 else "k.s"
    for a in sys.argv[2:]:
        k,v=a.split("=")
        setattr(cfg,k,{"0":False,"1":True,"None":None}.get(v,v))
    s,st=build(cfg)
    open(out,"w").write(s)
    print(out,len(s),"bytes",st)
```

```python
import sys, math, struct
from ir import Prog, Ins
KNAME="recurrent_scan__sliding_block__mixer_channel_mlp__prompt_kernel"

def f32(x): return struct.unpack("<I", struct.pack("<f", x))[0]
def hx(x): return "0x%08x" % (x & 0xffffffff)

WS_QKV=0
WS_H=96*64*1024
WS_O=WS_H+64*112*1024
WS_FL=WS_O+64*32*1024
FL_F1=0; FL_F2=4096; FL_F3=8192; FL_BYTES=10240
WS_DBG=WS_FL+16384
WS_SIZE=WS_DBG+(1<<20)
LDS_SCR=81920
LDS_STAT=LDS_SCR
LDS_CS=LDS_SCR+4096
LDS_WQ=65536
LDS_K=0
LDS_V=16384
VSTRIDE=1088
LDS_HR=49152
LDS_WR=98304
LDS_TOTAL=163840
SPIN_MAX=200000
S_X=4; S_U0=8; S_U1=12; S_W1=16; S_WS=20; S_W2=24; S_WO=28; S_OUT=32
S_B1=36; S_B2=38; S_DBG=40
sW=42; sMW=43; sNW=44; sTB=45; sG=46; sJ=47
sU0=48; sU1=49; sU2=50; sUQ=51
sT0=52; sT1=53; sT2=54; sT3=55; sT4=56; sT5=57; sT6=58; sT7=59
sMASKHI=74; sGB=75; sLO32=76
sXOFF=78; sW0OFF=79; sW1OFF=80; sPITCH1=81; sW2OFF=82; sWQOFF=83
sST0=84; sST1=85; sST2=86; sST3=87
sXCD=88; sSLOT=89; sQSC0=90; sQSC1=91
sHD=92; sQB=93; sT2B=94; sC2=95; sISH=96
sA=97; sB=98; sC=99; sD=100; sE=101
def srd(b): return "s[%d:%d]"%(b,b+3)
def vr(b,n=None):
    if n is None or n==1: return "v%d"%b
    return "v[%d:%d]"%(b,b+n-1)

vSTAMP=0
def stamp_flush(P,cfg):
    if not cfg.stamps: return
    P("s_lshl_b32 s66, s2, 3"); P("s_add_u32 s66, s66, s%d"%sW); P("s_lshl_b32 s66, s66, 8"); P("s_add_u32 s66, s66, %d"%WS_DBG)
    P("v_and_b32 v2, 63, v1"); P("v_lshlrev_b32 v2, 2, v2")
    P("s_mov_b64 exec, -1")
    P("buffer_store_dword v%d, v2, %s, s66 offen"%(vSTAMP,srd(S_WS)))
    P("s_mov_b64 exec, -1")
class Cfg:
    stop_after=None
    interleave=True
    stamps=False

def setup(P,cfg):
    P("s_cmp_ge_u32 s2, 256")
    P("s_cbranch_scc1 L_end")
    if cfg.stamps or getattr(cfg,'dbgtime',False):
        P("s_memrealtime s[92:93]"); P("s_memtime s[94:95]")
    P("s_load_dwordx4 s[52:55], s[0:1], 0")
    P("s_load_dwordx2 s[56:57], s[0:1], 16")
    P("s_load_dwordx4 s[60:63], s[0:1], 32")
    P("s_load_dwordx4 s[64:67], s[0:1], 48")
    P("s_load_dwordx4 s[68:71], s[0:1], 64")
    P("s_load_dwordx2 s[72:73], s[0:1], 80")
    P("v_lshrrev_b32 v2, 6, v0")
    P("v_and_b32 v1, 63, v0")
    P("v_readfirstlane_b32 s%d, v2"%sW)
    P("s_and_b32 s%d, s2, 7"%sXCD)
    P("s_lshr_b32 s%d, s2, 3"%sSLOT)
    P("s_and_b32 s%d, s%d, 3"%(sMW,sW))
    P("s_lshr_b32 s%d, s%d, 2"%(sNW,sW))
    P("s_lshr_b32 s%d, s%d, 2"%(sA,sXCD))
    P("s_lshl_b32 s%d, s%d, 3"%(sA,sA))
    P("s_lshr_b32 s%d, s%d, 2"%(sB,sSLOT))
    P("s_add_u32 s%d, s%d, s%d"%(sTB,sA,sB))
    P("s_and_b32 s%d, s%d, 3"%(sG,sXCD))
    P("s_and_b32 s%d, s%d, 3"%(sJ,sSLOT))
    P("s_mul_i32 s%d, s%d, 6"%(sA,sG))
    P("s_lshl_b32 s%d, s%d, 1"%(sB,sJ))
    P("s_add_u32 s%d, s%d, 2"%(sC,sJ))
    P("s_cmp_lt_u32 s%d, 2"%sJ)
    P("s_cselect_b32 s%d, s%d, s%d"%(sB,sB,sC))
    P("s_add_u32 s%d, s%d, s%d"%(sU0,sA,sB))
    P("s_mul_i32 s%d, s%d, 7"%(sA,sG))
    P("s_add_u32 s%d, s%d, 6"%(sUQ,sA))
    P("s_add_u32 s%d, s%d, s%d"%(sB,sA,sJ))
    P("s_lshl_b32 s%d, s%d, 1"%(sC,sJ))
    P("s_add_u32 s%d, s%d, s%d"%(sC,sC,sA))
    P("s_sub_u32 s%d, s%d, 2"%(sC,sC))
    P("s_add_u32 s%d, s%d, 1"%(sD,sC))
    P("s_add_u32 s%d, s%d, 1"%(sE,sU0))
    P("s_cmp_lt_u32 s%d, 2"%sJ)
    P("s_cselect_b32 s%d, s%d, s%d"%(sU1,sE,sC))
    P("s_cselect_b32 s%d, s%d, s%d"%(sU2,sB,sD))
    P("s_cselect_b32 s%d, 0, 1"%sISH)
    P("s_movk_i32 s%d, 3584"%sPITCH1)
    P("s_cselect_b32 s%d, 3072, s%d"%(sPITCH1,sPITCH1))
    P("s_mov_b32 s%d, 0xffff0000"%sMASKHI)
    P("s_mov_b32 s%d, -1"%sLO32)
    P("s_mov_b32 s%d, 0"%(sLO32+1))
    P("s_waitcnt lgkmcnt(0)")
    if cfg.stamps:
        P("v_mov_b32 v0, 0")
        P("v_writelane_b32 v0, s92, 31"); P("v_writelane_b32 v0, s94, 63")
    def mk(b, ptr, size):
        P("s_mov_b32 s%d, s%d"%(b,ptr)); P("s_and_b32 s%d, s%d, 0xffff"%(b+1,ptr+1))
        P("s_mov_b32 s%d, %d"%(b+2,size)); P("s_mov_b32 s%d, 0x00020000"%(b+3))
    mk(S_X,52,2097152); mk(S_U0,54,1572864); mk(S_W1,60,1835008)
    P("s_cmp_lt_u32 s%d, 2"%sJ)
    P("s_cselect_b32 s%d, s54, s60"%(S_U1))
    P("s_cselect_b32 s%d, s55, s61"%(S_U1+1))
    P("s_and_b32 s%d, s%d, 0xffff"%(S_U1+1,S_U1+1))
    P("s_cmp_lt_u32 s%d, 2"%sJ)
    P("s_mov_b32 s%d, 1835008"%(S_U1+2))
    P("s_cselect_b32 s%d, 1572864, s%d"%(S_U1+2,S_U1+2))
    P("s_mov_b32 s%d, 0x00020000"%(S_U1+3))
    mk(S_WS,72,WS_SIZE); mk(S_W2,64,1835008); mk(S_WO,56,524288); mk(S_OUT,68,2097152)
    P("s_mov_b32 s%d, s62"%S_B1); P("s_mov_b32 s%d, s63"%(S_B1+1))
    P("s_mov_b32 s%d, s66"%S_B2); P("s_mov_b32 s%d, s67"%(S_B2+1))
    P("s_mov_b32 s%d, s70"%S_DBG); P("s_mov_b32 s%d, s71"%(S_DBG+1))
    if getattr(cfg,'dbgtime',False):
        P("s_mov_b32 s70, s92"); P("s_mov_b32 s72, s94")

STAMPS={}
def stamp(P,cfg,name):
    if not cfg.stamps: return
    if name not in STAMPS: STAMPS[name]=len(STAMPS)
    idx=STAMPS[name]; assert idx<31
    P.wait_lgkm0()
    P("s_memrealtime s[66:67]")
    P("s_memtime s[68:69]")
    P("s_waitcnt lgkmcnt(0)")
    P("v_writelane_b32 v%d, s66, %d"%(vSTAMP,idx))
    P("v_writelane_b32 v%d, s68, %d"%(vSTAMP,idx+32))

vLANE=1; vSEL=2; vXA=6; vWA=10; vX0=14; vX1=15; vWQ=16; vW1=17; vU1=18; vWQT=19
vST=20; vCS0=24; vCS1=28; vWF=32; vACC0=48; vACC1=64; vACC2=80
vAUGX=96; vAUGW=100; vRS0=104; vRS1=105; vRR=106; vB1a=107; vB1b=108; vB1c=109
vT=110
vGA=126; vL16=127
vXF=128
def X(k): return vr(vXF+4*k,4)

def p1_dma_stage(P,st):
    slot=(st&3)*32768
    P("s_add_u32 m0, s%d, %d"%(sA,slot))
    P("s_add_u32 s%d, s%d, %d"%(sC,sXOFF,st*128))
    P("buffer_load_dwordx4 v%d, %s, s%d offen lds"%(vX0,srd(S_X),sC))
    P("s_add_u32 m0, s%d, %d"%(sA,slot+1024))
    P("buffer_load_dwordx4 v%d, %s, s%d offen lds"%(vX1,srd(S_X),sC))
    P("s_add_u32 m0, s%d, %d"%(sB,slot+16384))
    P("s_add_u32 s%d, s%d, %d"%(sC,sW0OFF,st*64*3072))
    P("buffer_load_dwordx4 v%d, %s, s%d offen lds"%(vWQ,srd(S_U0),sC))
    P("s_add_u32 m0, s%d, %d"%(sB,slot+24576))
    P("s_mul_i32 s%d, s%d, %d"%(sC,sPITCH1,st*64))
    P("s_add_u32 s%d, s%d, s%d"%(sC,sC,sW1OFF))
    P("buffer_load_dwordx4 v%d, %s, s%d offen lds"%(vU1,srd(S_U1),sC), tag="st%d"%st)

def p1_dma_w2(P,half):
    for q in range(4*half,4*half+4):
        P("s_add_u32 m0, s%d, %d"%(sB,q*8192))
        P("s_add_u32 s%d, s%d, %d"%(sC,sW2OFF,q*64*3584))
        P("buffer_load_dwordx4 v%d, %s, s%d offen lds"%(vW1,srd(S_W1),sC), tag="w2_%d"%half)
def p1_dma_wq(P):
    for p in range(2):
        P("s_add_u32 m0, s%d, %d"%(sA,LDS_WQ+p*1024))
        P("s_add_u32 s%d, s%d, %d"%(sC,sWQOFF,p*32*3584))
        P("buffer_load_dwordx4 v%d, %s, s%d offen lds"%(vWQT,srd(S_W1),sC), tag="wq")

def p1_setup(P,cfg):
    t=vT
    P("v_lshrrev_b32 v%d, 3, v%d"%(t,vLANE))
    P("v_and_b32 v%d, 7, v%d"%(t+1,vLANE))
    P("v_lshrrev_b32 v%d, 1, v%d"%(t+2,t))
    P("v_xor_b32 v%d, v%d, v%d"%(t+3,t+1,t+2))
    P("v_xor_b32 v%d, 4, v%d"%(t+4,t+3))
    P("s_lshl_b32 s%d, s%d, 4"%(sA,sW))
    P("v_add_u32 v%d, s%d, v%d"%(t+5,sA,t))
    P("v_lshlrev_b32 v%d, 10, v%d"%(t+5,t+5))
    P("v_lshl_add_u32 v%d, v%d, 4, v%d"%(vX0,t+3,t+5))
    P("v_add_u32 v%d, 8192, v%d"%(t+5,t+5))
    P("v_lshl_add_u32 v%d, v%d, 4, v%d"%(vX1,t+4,t+5))
    P("v_and_b32 v%d, 1, v%d"%(t+2,t+2))
    P("v_lshlrev_b32 v%d, 2, v%d"%(t+2,t+2))
    P("v_xor_b32 v%d, v%d, v%d"%(t+3,t+1,t+2))
    P("v_lshlrev_b32 v%d, 4, v%d"%(t+3,t+3))
    P("s_lshl_b32 s%d, s%d, 3"%(sA,sW))
    P("v_add_u32 v%d, s%d, v%d"%(t+5,sA,t))
    P("v_mul_u32_u24 v%d, 3072, v%d"%(t+6,t+5))
    P("v_add_u32 v%d, v%d, v%d"%(vWQ,t+6,t+3))
    P("v_mul_u32_u24 v%d, 3584, v%d"%(t+6,t+5))
    P("v_add_u32 v%d, v%d, v%d"%(vW1,t+6,t+3))
    P("v_mul_u32_u24 v%d, s%d, v%d"%(t+6,sPITCH1,t+5))
    P("v_add_u32 v%d, v%d, v%d"%(vU1,t+6,t+3))
    P("v_lshrrev_b32 v%d, 1, v%d"%(t+5,vLANE))
    P("s_lshl_b32 s%d, s%d, 6"%(sA,sW))
    P("v_add_u32 v%d, s%d, v%d"%(t+5,sA,t+5))
    P("v_mul_u32_u24 v%d, 3584, v%d"%(t+5,t+5))
    P("v_and_b32 v%d, 1, v%d"%(t+6,vLANE))
    P("v_lshl_add_u32 v%d, v%d, 4, v%d"%(vWQT,t+6,t+5))
    P("s_lshl_b32 s%d, s%d, 17"%(sXOFF,sTB))
    P("s_lshl_b32 s%d, s%d, 7"%(sW0OFF,sU0))
    P("s_lshl_b32 s%d, s%d, 7"%(sW1OFF,sU1))
    P("s_lshl_b32 s%d, s%d, 7"%(sW2OFF,sU2))
    P("s_lshl_b32 s%d, s%d, 7"%(sWQOFF,sUQ))
    P("s_lshl_b32 s%d, s%d, 5"%(sC,sJ))
    P("s_add_u32 s%d, s%d, s%d"%(sWQOFF,sWQOFF,sC))
    P("s_lshl_b32 s%d, s%d, 11"%(sA,sW))
    P("s_lshl_b32 s%d, s%d, 10"%(sB,sW))
    L=P.newlabel("L_noclr")
    P("s_lshl_b32 s%d, s2, 3"%sC); P("s_add_u32 s%d, s%d, s%d"%(sC,sC,sW)); P("s_cmp_lg_u32 s%d, 7"%sC)
    P("s_cbranch_scc1 %s"%L)
    P("v_mov_b32 v%d, 0"%(t+8)); P("v_mov_b32 v%d, 0"%(t+9)); P("v_mov_b32 v%d, 0"%(t+10)); P("v_mov_b32 v%d, 0"%(t+11))
    P("v_lshlrev_b32 v%d, 4, v%d"%(t+12,vLANE))
    for i in range(FL_BYTES//1024):
        P("s_mov_b32 s%d, %d"%(sC,WS_FL+i*1024))
        P.raw("  buffer_store_dwordx4 %s, v%d, %s, s%d offen sc1"%(vr(t+8,4),t+12,srd(S_WS),sC))
    P("s_nop 1")
    P.label(L)
    for st in range(4): p1_dma_stage(P,st)
    P("v_and_b32 v%d, 31, v%d"%(t,vLANE))
    P("s_lshl_b32 s%d, s%d, 5"%(sC,sNW))
    P("v_add_u32 v%d, s%d, v%d"%(t+1,sC,t))
    P("s_lshl_b32 s%d, s%d, 6"%(sC,sU1)); P("v_add_u32 v%d, s%d, v%d"%(t+2,sC,t+1)); P("v_lshlrev_b32 v%d, 1, v%d"%(t+2,t+2))
    P("s_lshl_b32 s%d, s%d, 6"%(sC,sU2)); P("v_add_u32 v%d, s%d, v%d"%(t+3,sC,t+1)); P("v_lshlrev_b32 v%d, 1, v%d"%(t+3,t+3))
    P("v_and_b32 v%d, 15, v%d"%(t+4,vLANE))
    P("s_lshl_b32 s%d, s%d, 6"%(sC,sUQ)); P("s_lshl_b32 s%d, s%d, 4"%(sD,sJ)); P("s_add_u32 s%d, s%d, s%d"%(sC,sC,sD))
    P("v_add_u32 v%d, s%d, v%d"%(t+4,sC,t+4)); P("v_lshlrev_b32 v%d, 1, v%d"%(t+4,t+4))
    P("v_mul_u32_u24 v%d, s%d, v%d"%(t+2,sISH,t+2))
    P("global_load_ushort v%d, v%d, s[%d:%d]"%(vB1a,t+2,S_B1,S_B1+1))
    P("global_load_ushort v%d, v%d, s[%d:%d]"%(vB1b,t+3,S_B1,S_B1+1))
    P("global_load_ushort v%d, v%d, s[%d:%d]"%(vB1c,t+4,S_B1,S_B1+1), tag="b1")
    P("s_xor_b32 s%d, s%d, s%d"%(sC,sMW,sNW))
    P("v_and_b32 v%d, 31, v%d"%(t,vLANE))
    P("v_lshrrev_b32 v%d, 5, v%d"%(t+1,vLANE))
    P("v_lshrrev_b32 v%d, 1, v%d"%(t+2,t)); P("v_and_b32 v%d, 7, v%d"%(t+2,t+2))
    P("s_lshl_b32 s%d, s%d, 5"%(sD,sMW)); P("v_add_u32 v%d, s%d, v%d"%(t+3,sD,t)); P("v_lshlrev_b32 v%d, 7, v%d"%(t+3,t+3))
    for i in range(4):
        P("s_xor_b32 s%d, s%d, %d"%(sD,sC,i)); P("s_lshl_b32 s%d, s%d, 1"%(sD,sD))
        P("v_add_u32 v%d, s%d, v%d"%(t+4,sD,t+1))
        P("v_xor_b32 v%d, v%d, v%d"%(t+4,t+4,t+2))
        P("v_lshl_add_u32 v%d, v%d, 4, v%d"%(vXA+i,t+4,t+3))
    P("v_and_b32 v%d, 15, v%d"%(t,vLANE)); P("v_lshrrev_b32 v%d, 2, v%d"%(t,t))
    P("v_and_b32 v%d, 3, v%d"%(t+2,vLANE))
    P("v_lshrrev_b32 v%d, 4, v%d"%(t+3,vLANE)); P("v_and_b32 v%d, 1, v%d"%(t+3,t+3))
    P("v_lshlrev_b32 v%d, 1, v%d"%(t+3,t+3))
    P("v_lshrrev_b32 v%d, 1, v%d"%(t+4,t+2)); P("v_add_u32 v%d, v%d, v%d"%(t+3,t+3,t+4))
    P("s_lshl_b32 s%d, s%d, 2"%(sD,sNW)); P("v_add_u32 v%d, s%d, v%d"%(t+3,sD,t+3))
    P("v_lshrrev_b32 v%d, 1, v%d"%(t+4,t)); P("v_lshlrev_b32 v%d, 2, v%d"%(t+4,t+4))
    P("v_xor_b32 v%d, v%d, v%d"%(t+3,t+3,t+4)); P("v_lshlrev_b32 v%d, 4, v%d"%(t+3,t+3))
    P("v_and_b32 v%d, 1, v%d"%(t+4,t+2)); P("v_lshl_add_u32 v%d, v%d, 3, v%d"%(t+3,t+4,t+3))
    P("v_lshl_add_u32 v%d, v%d, 3, v%d"%(t+4,t+1,t))
    P("v_lshl_add_u32 v%d, v%d, 7, v%d"%(t+3,t+4,t+3))
    for i in range(4):
        P("s_xor_b32 s%d, s%d, %d"%(sD,sC,i)); P("s_lshl_b32 s%d, s%d, 11"%(sD,sD))
        P("v_add_u32 v%d, s%d, v%d"%(vWA+i,sD,t+3))
    m=0
    for b in (0,32,8,40,20,52,28,60): m|=1<<b
    P("s_mov_b32 s52, %s"%hx(m&0xffffffff)); P("s_mov_b32 s53, %s"%hx(m>>32))
    P("v_mov_b32 v%d, 0x3f803f80"%(t))
    for r in range(4): P("v_cndmask_b32 v%d, 0, v%d, s[52:53]"%(vSEL+r,t))
    for r in range(4): P("v_mov_b32 v%d, 0"%(vST+r))
    P("v_lshlrev_b32 v%d, 4, v%d"%(vL16,vLANE))
    P("v_mov_b32 v%d, %s"%(vGA,hx(f32(-2*0.7978845608028654*1.4426950408889634))))
    P("s_mov_b32 s%d, %s"%(sGB,hx(f32(-2*0.7978845608028654*1.4426950408889634*0.044715))))

def p1_reads(P,st,i):
    slot=(st&1)*32768
    b=vWF+8*(i&1)
    P("ds_read_b128 %s, v%d offset:%d"%(X(4*st+i),vXA+i,slot))
    P("ds_read_b64_tr_b16 %s, v%d offset:%d"%(vr(b,2),vWA+i,slot+16384))
    P("ds_read_b64_tr_b16 %s, v%d offset:%d"%(vr(b+2,2),vWA+i,slot+16384+512))
    P("ds_read_b64_tr_b16 %s, v%d offset:%d"%(vr(b+4,2),vWA+i,slot+24576))
    P("ds_read_b64_tr_b16 %s, v%d offset:%d"%(vr(b+6,2),vWA+i,slot+24576+512))
def p1_toggle(P):
    for r in list(range(vXA,vXA+4))+list(range(vWA,vWA+4)):
        P("v_xor_b32 v%d, 0x10000, v%d"%(r,r))
def p1_mfma(P,st,i):
    b=vWF+8*(i&1); first=(st==0 and i==0)
    P("v_mfma_f32_32x32x16_bf16 %s, %s, %s, %s"%(vr(vACC0,16),vr(b,4),X(4*st+i),"0" if first else vr(vACC0,16)))
    P("v_mfma_f32_32x32x16_bf16 %s, %s, %s, %s"%(vr(vACC1,16),vr(b+4,4),X(4*st+i),"0" if first else vr(vACC1,16)))
    if i==0:
        P("v_mfma_f32_16x16x32_bf16 %s, %s, %s, %s"%(vr(vCS0,4),vr(vSEL,4),vr(b,4),"0" if st==0 else vr(vCS0,4)))
        P("v_mfma_f32_16x16x32_bf16 %s, %s, %s, %s"%(vr(vCS1,4),vr(vSEL,4),vr(b+4,4),"0" if st==0 else vr(vCS1,4)))
def p1_stats(k):
    L=[]; t=vT
    for r in range(4):
        x=vXF+4*k+r; a=t+2*(r&1)
        L.append("v_lshlrev_b32 v%d, 16, v%d"%(a,x))
        L.append("v_and_b32 v%d, s%d, v%d"%(a+1,sMASKHI,x))
        L.append("v_add_f32 v%d, v%d, v%d"%(vST,vST,a))
        L.append("v_add_f32 v%d, v%d, v%d"%(vST+1,vST+1,a+1))
        L.append("v_fmac_f32 v%d, v%d, v%d"%(vST+2,a,a))
        L.append("v_fmac_f32 v%d, v%d, v%d"%(vST+3,a+1,a+1))
    return L

def emit(P,L):
    for x in L:
        if callable(x): x(P)
        else: P(x)

def merge(main, fill, per=None, start=0):
    def cost(s):
        if callable(s): return 0
        op=s.split()[0]
        if op.startswith("v_mfma"): return 8
        if op in("v_exp_f32","v_rcp_f32","v_rsq_f32"): return 8
        if op.startswith("v_"): return 4
        return 2
    nm=sum(1 for s in main[start:] if not callable(s) and s.startswith("v_mfma"))
    tot=sum(cost(s) for s in fill)
    out=list(main[:start]); fi=0; acc=0; seen=0
    for s in main[start:]:
        out.append(s)
        if not callable(s) and s.startswith("v_mfma"):
            seen+=1
            target=tot*seen/max(nm,1)
            while fi<len(fill) and acc+cost(fill[fi])*0.5<=target:
                out.append(fill[fi]); acc+=cost(fill[fi]); fi+=1
    out+=fill[fi:]
    return out

def stats_finalize():
    t=vT; L=[]
    L.append("ds_read_b128 %s, v%d"%(vr(t,4),t+14))
    L.append("ds_read_b128 %s, v%d offset:16"%(vr(t+4,4),t+14))
    L+=["v_add_f32 v%d, v%d, v%d"%(t,t,t+2),"v_add_f32 v%d, v%d, v%d"%(t+1,t+1,t+3),
        "v_add_f32 v%d, v%d, v%d"%(t+4,t+4,t+6),"v_add_f32 v%d, v%d, v%d"%(t+5,t+5,t+7),
        "v_add_f32 v%d, v%d, v%d"%(t,t,t+4),"v_add_f32 v%d, v%d, v%d"%(t+1,t+1,t+5),
        "v_mul_f32 v%d, %s, v%d"%(t,hx(f32(1/512.)),t),
        "v_mul_f32 v%d, %s, v%d"%(t+1,hx(f32(1/512.)),t+1),
        "v_fma_f32 v%d, -v%d, v%d, v%d"%(t+1,t,t,t+1),
        "v_max_f32 v%d, 0, v%d"%(t+1,t+1),
        "v_add_f32 v%d, %s, v%d"%(t+2,hx(f32(1e-5)),t+1),
        "v_rsq_f32 v%d, v%d"%(t+2,t+2),
        "v_mul_f32 v%d, v%d, v%d"%(t+3,t+1,t+2),
        "v_mul_f32 v%d, v%d, v%d"%(t+3,t+3,t+2),
        "v_add_f32 v%d, %s, v%d"%(t+3,hx(f32(1e-5)),t+3),
        "v_rsq_f32 v%d, v%d"%(t+3,t+3),
        "v_mul_f32 v%d, s%d, v%d"%(vRS0,sQSC0,t+2),
        "v_mul_f32 v%d, v%d, v%d"%(vRR,t+2,t+3),
        "v_mul_f32 v%d, s%d, v%d"%(vRS1,sQSC1,t+2),
        "v_rcp_f32 v%d, v%d"%(t+4,vRR),
        "v_sub_f32 v%d, 0, v%d"%(t,t),
        "v_cvt_pk_bf16_f32 v%d, v%d, v%d"%(t+5,t,t),
        "v_cvt_pk_bf16_f32 v%d, v%d, v%d"%(t+6,t+4,t+4),
        "v_and_b32 v%d, s%d, v%d"%(t+7,sMASKHI,t+5),
        "v_and_b32 v%d, s%d, v%d"%(t+6,sMASKHI,t+6),
        "v_sub_f32 v%d, v%d, v%d"%(t+7,t,t+7),
        "v_sub_f32 v%d, v%d, v%d"%(t+6,t+4,t+6),
        "v_cvt_pk_bf16_f32 v%d, v%d, v%d"%(t+7,t+7,t+4),
        "v_cvt_pk_bf16_f32 v%d, v%d, 0"%(t+6,t+6),
        "v_cndmask_b32 v%d, 0, v%d, s[%d:%d]"%(vAUGX,t+5,sLO32,sLO32+1),
        "v_cndmask_b32 v%d, 0, v%d, s[%d:%d]"%(vAUGX+1,t+7,sLO32,sLO32+1),
        "v_cndmask_b32 v%d, 0, v%d, s[%d:%d]"%(vAUGX+2,t+6,sLO32,sLO32+1),
        "v_mov_b32 v%d, 0"%(vAUGX+3)]
    return L
def augw(csreg, breg, acc, addr, blk):
    c=csreg; t=vT+12
    L=["ds_read_b128 %s, v%d offset:%d"%(vr(c,4),addr,blk*1024),
       "v_add_f32 v%d, v%d, v%d"%(c,c,c+1),"v_add_f32 v%d, v%d, v%d"%(c+2,c+2,c+3),"v_add_f32 v%d, v%d, v%d"%(c,c,c+2),
       "v_cvt_pk_bf16_f32 v%d, v%d, v%d"%(c+1,c,c),
       "v_and_b32 v%d, s%d, v%d"%(c+2,sMASKHI,c+1),
       "v_sub_f32 v%d, v%d, v%d"%(c+2,c,c+2),
       "v_cvt_pk_bf16_f32 v%d, v%d, v%d"%(vAUGW,c,c+2)]
    if breg is None:
        L+=["v_and_b32 v%d, 0xffff, v%d"%(vAUGW+1,c+1),"v_mov_b32 v%d, 0"%(vAUGW+2)]
    else:
        L+=["v_perm_b32 v%d, v%d, v%d, s%d"%(vAUGW+1,breg,c+1,sE),"v_mov_b32 v%d, v%d"%(vAUGW+2,breg)]
    L+=["v_mov_b32 v%d, 0"%(vAUGW+3),
        "v_mfma_f32_32x32x16_bf16 %s, %s, %s, %s"%(vr(acc,16),vr(vAUGW,4),vr(vAUGX,4),vr(acc,16))]
    return L
def epi_qkv(acc, rs, soff0, soff1, tag):
    L=[]
    for v in range(16): L.append("v_mul_f32 v%d, v%d, v%d"%(acc+v,rs,acc+v))
    for k in range(8): L.append("v_cvt_pk_bf16_f32 v%d, v%d, v%d"%(acc+k,acc+2*k,acc+2*k+1))
    L.append("buffer_store_dwordx4 %s, v%d, %s, s%d offen sc1"%(vr(acc,4),vL16,srd(S_WS),soff0))
    L.append(lambda P: P("buffer_store_dwordx4 %s, v%d, %s, s%d offen sc1"%(vr(acc+4,4),vL16,srd(S_WS),soff1),tag=tag))
    return L
def epi_gelu(acc, nreg, soff, tag):
    L=[]; t=vT
    for g0 in range(0,nreg,4):
        R=range(g0,g0+4)
        for v in R: L.append("v_mul_f32 v%d, v%d, v%d"%(acc+v,vRR,acc+v))
        for v in R: L.append("v_mul_f32 v%d, v%d, v%d"%(t+(v&3),acc+v,acc+v))
        for v in R: L.append("v_fma_f32 v%d, v%d, s%d, v%d"%(t+(v&3),t+(v&3),sGB,vGA))
        for v in R: L.append("v_mul_f32 v%d, v%d, v%d"%(t+(v&3),t+(v&3),acc+v))
        for v in R: L.append("v_exp_f32 v%d, v%d"%(t+(v&3),t+(v&3)))
        for v in R: L.append("v_add_f32 v%d, 1.0, v%d"%(t+(v&3),t+(v&3)))
        for v in R: L.append("v_rcp_f32 v%d, v%d"%(t+(v&3),t+(v&3)))
        for v in R: L.append("v_mul_f32 v%d, v%d, v%d"%(acc+v,acc+v,t+(v&3)))
        for k in (g0//2,g0//2+1): L.append("v_cvt_pk_bf16_f32 v%d, v%d, v%d"%(acc+k,acc+2*k,acc+2*k+1))
        if g0==4:
            if nreg==8: L.append(lambda P: P("buffer_store_dwordx4 %s, v%d, %s, s%d offen sc1"%(vr(acc,4),vL16,srd(S_WS),soff),tag=tag))
            else: L.append("buffer_store_dwordx4 %s, v%d, %s, s%d offen sc1"%(vr(acc,4),vL16,srd(S_WS),soff))
        if g0==12:
            L.append(lambda P: P("buffer_store_dwordx4 %s, v%d, %s, s%d offen offset:1024 sc1"%(vr(acc+4,4),vL16,srd(S_WS),soff),tag=tag))
    return L

def p1(P,cfg):
    t=vT
    p1_setup(P,cfg)
    stamp(P,cfg,"setup")
    qs=hx(f32(0.25*1.4426950408889634))
    P("s_cmp_lt_u32 s%d, 8"%sU0); P("s_cselect_b32 s%d, %s, 1.0"%(sQSC0,qs))
    P("s_cmp_lt_u32 s%d, 8"%sU1); P("s_cselect_b32 s%d, %s, 1.0"%(sQSC1,qs))
    P("s_lshl_b32 s%d, s%d, 2"%(sC,sTB)); P("s_add_u32 s%d, s%d, s%d"%(sC,sC,sMW))
    P("s_lshl_b32 s%d, s%d, 1"%(sD,sNW))
    def qkvoff(dst,u):
        P("s_lshl_b32 s%d, s%d, 2"%(dst,u)); P("s_add_u32 s%d, s%d, s%d"%(dst,dst,sD)); P("s_lshl_b32 s%d, s%d, 6"%(dst,dst))
        P("s_add_u32 s%d, s%d, s%d"%(dst,dst,sC)); P("s_lshl_b32 s%d, s%d, 10"%(dst,dst))
    def hoff(dst,u,extra_reg=None):
        P("s_mul_i32 s%d, s%d, 112"%(dst,sC)); P("s_lshl_b32 s%d, s%d, 2"%(sE,u)); P("s_add_u32 s%d, s%d, s%d"%(dst,dst,sE))
        P("s_add_u32 s%d, s%d, s%d"%(dst,dst,extra_reg)); P("s_lshl_b32 s%d, s%d, 10"%(dst,dst)); P("s_add_u32 s%d, s%d, %d"%(dst,dst,WS_H))
    qkvoff(sST0,sU0)
    qkvoff(sST1,sU1); hoff(sT2,sU1,sD)
    P("s_cmp_eq_u32 s%d, 1"%sISH); P("s_cselect_b32 s%d, s%d, s%d"%(sST1,sT2,sST1))
    hoff(sST2,sU2,sD); hoff(sST3,sUQ,sJ)
    P("s_mov_b32 s%d, 0x05040100"%sE)
    vSTW=vT+13; vSTR=vT+14
    P.wait_vm("st0")
    L=P.newlabel("L_nogo")
    P("s_lshl_b32 s%d, s2, 3"%sC); P("s_add_u32 s%d, s%d, s%d"%(sC,sC,sW)); P("s_cmp_lg_u32 s%d, 7"%sC)
    P("s_cbranch_scc1 %s"%L)
    P("v_mov_b32 v%d, 0"%t); P("v_mov_b32 v%d, 1"%(t+1))
    P("s_mov_b64 exec, 1")
    P.raw("  global_store_dword v%d, v%d, s[%d:%d] sc1"%(t,t+1,S_DBG,S_DBG+1))
    P("s_mov_b64 exec, -1")
    P.label(L)
    P("s_barrier")
    stamp(P,cfg,"st0 landed")
    p1_reads(P,0,0)
    for st in range(8):
        for i in range(3):
            p1_reads(P,st,i+1)
            main=[]
            p1_mfma(P,st,i)
            if i in (0,2): emit(P,p1_stats(4*st+i))
        P.wait_lgkm0()
        if st<7: P.wait_vm("st%d"%(st+1))
        else: P.wait_vm("w2_0")
        P("s_barrier")
        if st in (0,3,7): stamp(P,cfg,"1a bar%d"%st)
        if st<4: p1_dma_stage(P,st+4)
        elif st==4: p1_dma_w2(P,0)
        elif st==5: p1_dma_w2(P,1)
        elif st==6: p1_dma_wq(P)
        elif st==7 and cfg.stop_after is None: g2_dma_w_prefetch(P)
        if st in (0,3,7): stamp(P,cfg,"1a dma%d"%st)
        if st&1: p1_toggle(P)
        if st<7: p1_reads(P,st+1,0)
        else: passB_reads(P,0)
        p1_mfma(P,st,3)
    stamp(P,cfg,"1a done")
    P("v_and_b32 v%d, 31, v%d"%(t,vLANE)); P("v_lshrrev_b32 v%d, 5, v%d"%(t+1,vLANE))
    P("s_lshl_b32 s%d, s%d, 10"%(sC,sMW)); P("s_add_u32 s%d, s%d, %d"%(sC,sC,LDS_STAT))
    P("v_lshlrev_b32 v%d, 5, v%d"%(t+2,t)); P("v_add_u32 v%d, s%d, v%d"%(vSTR,sC,t+2))
    P("s_lshl_b32 s%d, s%d, 4"%(sC,sNW)); P("v_lshl_add_u32 v%d, v%d, 3, v%d"%(t+3,t+1,vSTR)); P("v_add_u32 v%d, s%d, v%d"%(t+3,sC,t+3))
    P("v_add_f32 v%d, v%d, v%d"%(vST,vST,vST+1)); P("v_add_f32 v%d, v%d, v%d"%(vST+1,vST+2,vST+3))
    P("ds_write_b64 v%d, %s"%(t+3,vr(vST,2)))
    vCSR=vST+2; vCSW=vST+3
    P("s_lshl_b32 s%d, s%d, 9"%(sC,sNW)); P("s_add_u32 s%d, s%d, %d"%(sC,sC,LDS_CS))
    P("v_lshlrev_b32 v%d, 4, v%d"%(t+4,t)); P("v_add_u32 v%d, s%d, v%d"%(t+4,sC,t+4))
    P("s_lshl_b32 s%d, s%d, 2"%(sC,sMW)); P("v_add_u32 v%d, s%d, v%d"%(t+5,sC,t+4))
    P("ds_write_b32 v%d, v%d"%(t+5,vCS0)); P("ds_write_b32 v%d, v%d offset:1024"%(t+5,vCS1))
    P("v_mov_b32 v%d, v%d"%(vCSR,t+4)); P("v_mov_b32 v%d, v%d"%(vCSW,t+5))
    def passB_main(k0,k1):
        L=[]
        for ks in range(k0,k1):
            if ks+2<32: L+=passB_reads_L(ks+2)
            L+=passB_mfma_L(ks)
        return L
    emit(P,passB_reads_L(1))
    emit(P,passB_main(0,2))
    P.wait_lgkm0(); P.wait_vm("w2_1"); P("s_barrier")
    stamp(P,cfg,"X1")
    P("v_mov_b32 v%d, 0"%vWQ)
    P("global_load_dword v%d, v%d, s[%d:%d] sc1"%(vX0,vWQ,S_DBG,S_DBG+1), tag="go")
    Lh=P.newlabel("L_passB_h"); Lj=P.newlabel("L_passB_done")
    P("s_cmp_eq_u32 s%d, 1"%sISH); P("s_add_u32 s%d, s%d, 65536"%(sT0,sST0)); P("s_add_u32 s%d, s%d, 65536"%(sT1,sST1))
    P("s_cmp_eq_u32 s%d, 1"%sISH)
    P("s_cbranch_scc1 %s"%Lh)
    P.save_state("pb")
    for typ in (0,1):
        if typ==1:
            P.label(Lh); P.restore_state("pb")
        fill=stats_finalize()+augw(vT+8,None,vACC0,vCSR,0)+augw(vT+8,(vB1a if typ else None),vACC1,vCSR,1)
        fill+=epi_qkv(vACC0,vRS0,sST0,sT0,"q0")
        if typ==0: fill+=epi_qkv(vACC1,vRS1,sST1,sT1,"qkv")
        else:
            fill[-1]=(lambda P: P("buffer_store_dwordx4 %s, v%d, %s, s%d offen sc1"%(vr(vACC0+4,4),vL16,srd(S_WS),sT0),tag="qkv"))
            fill+=epi_gelu(vACC1,16,sST1,"h1")
        main=passB_main(2,32)
        emit(P, merge(main,fill) if cfg.interleave else main+fill)
        stamp(P,cfg,"passB compute")
        P("ds_write_b32 v%d, v%d offset:2048"%(vCSW,vCS0))
        P.wait_lgkm0(); P.wait_vm("qkv"); P.wait_vm("wq")
        P.wait_vm0()
        if typ==0:
            P("s_branch %s"%Lj); P.save_state("pb0")
    P.label(Lj)
    P("s_barrier")
    stamp(P,cfg,"passB done")
    L=P.newlabel("L_nof1"); Ls=P.newlabel("L_gospin"); Lk=P.newlabel("L_gook")
    P("s_cmp_lg_u32 s%d, 0"%sW); P("s_cbranch_scc1 %s"%L)
    P("s_mov_b32 s%d, %d"%(sD,SPIN_MAX))
    P.label(Ls)
    P("v_readfirstlane_b32 s%d, v%d"%(sC,vX0)); P("s_cmp_lg_u32 s%d, 0"%sC); P("s_cbranch_scc1 %s"%Lk)
    P("s_sub_u32 s%d, s%d, 1"%(sD,sD)); P("s_cmp_eq_u32 s%d, 0"%sD); P("s_cbranch_scc1 %s"%Lk)
    P("s_sleep 1")
    P.raw("  global_load_dword v%d, v%d, s[%d:%d] sc1"%(vX0,vWQ,S_DBG,S_DBG+1)); P.raw("  s_waitcnt vmcnt(0)")
    P("s_branch %s"%Ls)
    P.label(Lk)
    P("s_lshl_b32 s%d, s%d, 8"%(sC,sTB)); P("s_lshl_b32 s%d, s%d, 4"%(sD,sG)); P("s_add_u32 s%d, s%d, s%d"%(sC,sC,sD))
    P("s_lshl_b32 s%d, s%d, 2"%(sD,sJ)); P("s_add_u32 s%d, s%d, s%d"%(sC,sC,sD)); P("s_add_u32 s%d, s%d, %d"%(sC,sC,WS_FL+FL_F1))
    P("v_mov_b32 v%d, 1"%vX1)
    P("s_mov_b64 exec, 1")
    P.raw("  buffer_store_dword v%d, v%d, %s, s%d offen sc1"%(vX1,vWQ,srd(S_WS),sC))
    P("s_mov_b64 exec, -1")
    P.label(L)
    P("s_xor_b32 s%d, s%d, s%d"%(sC,sMW,sNW))
    P("v_and_b32 v%d, 15, v%d"%(t,vLANE)); P("v_lshrrev_b32 v%d, 2, v%d"%(t,t)); P("v_lshrrev_b32 v%d, 5, v%d"%(t+1,vLANE))
    P("v_lshl_add_u32 v%d, v%d, 3, v%d"%(t,t+1,t)); P("v_lshlrev_b32 v%d, 5, v%d"%(t,t))
    P("v_and_b32 v%d, 3, v%d"%(t+2,vLANE)); P("v_lshl_add_u32 v%d, v%d, 3, v%d"%(t,t+2,t))
    for i in range(4):
        P("s_xor_b32 s%d, s%d, %d"%(sD,sC,i)); P("s_lshl_b32 s%d, s%d, 9"%(sD,sD)); P("s_add_u32 s%d, s%d, %d"%(sD,sD,LDS_WQ))
        P("v_add_u32 v%d, s%d, v%d"%(vXA+i,sD,t))
    Ln1=P.newlabel("L_passC_nw1"); Lj=P.newlabel("L_passC_done")
    P("s_cmp_eq_u32 s%d, 1"%sNW); P("s_cbranch_scc1 %s"%Ln1)
    P.save_state("pc")
    fill=augw(vT+8,vB1b,vACC2,vCSR,2)+epi_gelu(vACC2,16,sST2,"h2")
    main=passC_reads_L(0)+passC_reads_L(1)
    for ks in range(32):
        if ks+2<32: main+=passC_reads_L(ks+2)
        main+=passC_mfma_L(ks)
    emit(P, merge(main,fill,start=8) if cfg.interleave else main+fill)
    P("ds_write_b32 v%d, v%d offset:3072"%(vCSW,vCS0))
    P.wait_lgkm0()
    P("s_barrier")
    emit(P, augw(vT+8,vB1c,vACC0,vCSR,3)+epi_gelu(vACC0,8,sST3,"hq"))
    P.wait_vm0() if cfg.stop_after=='p1' else None
    P("s_branch %s"%Lj)
    P.label(Ln1); P.restore_state("pc")
    emit(P, augw(vT+8,vB1b,vACC2,vCSR,2)+epi_gelu(vACC2,16,sST2,"h2"))
    P.wait_lgkm0()
    P("s_barrier")
    P.label(Lj)
    stamp(P,cfg,"P1 done")

def passB_reads_L(ks):
    q=ks>>2; i=ks&3; b=vWF+4*(ks&3)
    return ["ds_read_b64_tr_b16 %s, v%d offset:%d"%(vr(b,2),vWA+i,q*8192),
            "ds_read_b64_tr_b16 %s, v%d offset:%d"%(vr(b+2,2),vWA+i,q*8192+512)]
def passB_reads(P,ks): emit(P,passB_reads_L(ks))
def passB_mfma_L(ks):
    b=vWF+4*(ks&3); L=["v_mfma_f32_32x32x16_bf16 %s, %s, %s, %s"%(vr(vACC2,16),vr(b,4),X(ks),"0" if ks==0 else vr(vACC2,16))]
    if (ks&3)==0: L.append("v_mfma_f32_16x16x32_bf16 %s, %s, %s, %s"%(vr(vCS0,4),vr(vSEL,4),vr(b,4),"0" if ks==0 else vr(vCS0,4)))
    return L
def passC_reads_L(ks):
    q=ks>>2; i=ks&3; b=vWF+4*(ks&3)
    return ["ds_read_b64_tr_b16 %s, v%d offset:%d"%(vr(b,2),vXA+i,q*2048),
            "ds_read_b64_tr_b16 %s, v%d offset:%d"%(vr(b+2,2),vXA+i,q*2048+128)]
def passC_mfma_L(ks):
    b=vWF+4*(ks&3); L=["v_mfma_f32_32x32x16_bf16 %s, %s, %s, %s"%(vr(vACC0,16),vr(b,4),X(ks),"0" if ks==0 else vr(vACC0,16))]
    if (ks&3)==0: L.append("v_mfma_f32_16x16x32_bf16 %s, %s, %s, %s"%(vr(vCS0,4),vr(vSEL,4),vr(b,4),"0" if ks==0 else vr(vCS0,4)))
    return L


aQ=128; aK=132; aV=140; aS=156; aO=188; aM0=204; aM8=220; aKA=236; aVA=237; aT=242; aL16=252; aPOLL=253; aPA=254
NEG=0xF149F2CA
def setexec(P,nl):
    if nl>=32:
        P("s_mov_b32 exec_lo, %s"%hex((1<<32)-1 if nl>=32 else 0)); P("s_mov_b32 exec_hi, %s"%hex((1<<(nl-32))-1))
    else: P("s_mov_b64 exec, %s"%hex((1<<nl)-1))
def poll(P, areg, dreg, nl, soff, cfg, first=True):
    Ls=P.newlabel("L_spin"); Lk=P.newlabel("L_ok")
    P("s_mov_b32 s%d, %d"%(sT7,SPIN_MAX))
    P.label(Ls)
    setexec(P,nl)
    P("v_cmp_ne_u32 vcc, 1, v%d"%dreg)
    P("s_mov_b64 exec, -1")
    P("s_cbranch_vccz %s"%Lk)
    P("s_sub_u32 s%d, s%d, 1"%(sT7,sT7)); P("s_cmp_eq_u32 s%d, 0"%sT7); P("s_cbranch_scc1 %s"%Lk)
    setexec(P,nl)
    P.raw("  buffer_load_dword v%d, v%d, %s, s%d offen sc1"%(dreg,areg,srd(S_WS),soff))
    P("s_mov_b64 exec, -1")
    P.raw("  s_waitcnt vmcnt(0)")
    P("s_branch %s"%Ls)
    P.label(Lk)
def poll_issue(P, areg, dreg, nl, soff, tag):
    setexec(P,nl)
    P("buffer_load_dword v%d, v%d, %s, s%d offen sc1"%(dreg,areg,srd(S_WS),soff), tag=tag)
    P("s_mov_b64 exec, -1")

def att_indices(P):
    P("s_lshl_b32 s%d, s%d, 2"%(sHD,sXCD)); P("s_and_b32 s%d, s%d, 3"%(sC,sSLOT)); P("s_add_u32 s%d, s%d, s%d"%(sHD,sHD,sC))
    P("s_lshr_b32 s%d, s%d, 2"%(sQB,sSLOT))
def att_f1_addr(P):
    t=aT
    def cg(dst,add):
        P("s_add_u32 s%d, s%d, %d"%(sC,sXCD,add))
        P("s_mul_i32 s%d, s%d, 43"%(sD,sC)); P("s_lshr_b32 s%d, s%d, 8"%(sD,sD))
        P("s_mul_i32 s%d, s%d, 6"%(dst,sD)); P("s_sub_u32 s%d, s%d, s%d"%(sC,sC,dst))
        P("s_lshr_b32 s%d, s%d, 1"%(dst,sC)); P("s_sub_u32 s%d, s%d, 2"%(sT6,sC))
        P("s_cmp_lt_u32 s%d, 4"%sC); P("s_cselect_b32 s%d, s%d, s%d"%(dst,dst,sT6))
        P("s_lshl_b32 s%d, s%d, 2"%(sD,sD)); P("s_add_u32 s%d, s%d, s%d"%(dst,dst,sD))
    cg(sT0,0); cg(sT1,8); cg(sT2,16)
    P("v_mul_u32_u24 v%d, 86, v%d"%(t,vLANE)); P("v_lshrrev_b32 v%d, 8, v%d"%(t,t))
    P("v_mul_u32_u24 v%d, 3, v%d"%(t+1,t)); P("v_sub_u32 v%d, v%d, v%d"%(t+1,vLANE,t+1))
    P("v_mov_b32 v%d, s%d"%(t+2,sT0)); P("v_mov_b32 v%d, s%d"%(t+3,sT1)); P("v_mov_b32 v%d, s%d"%(t+4,sT2))
    P("v_cmp_eq_u32 vcc, 1, v%d"%(t+1)); P("v_cndmask_b32 v%d, v%d, v%d, vcc"%(t+2,t+2,t+3))
    P("v_cmp_eq_u32 vcc, 2, v%d"%(t+1)); P("v_cndmask_b32 v%d, v%d, v%d, vcc"%(t+2,t+2,t+4))
    P("s_lshl_b32 s%d, s%d, 1"%(sC,sQB)); P("s_sub_u32 s%d, s%d, 2"%(sC,sC))
    P("v_add_u32 v%d, s%d, v%d"%(t,sC,t)); P("v_max_i32 v%d, 0, v%d"%(t,t))
    P("v_lshlrev_b32 v%d, 8, v%d"%(t,t)); P("v_lshl_add_u32 v%d, v%d, 2, v%d"%(aPA,t+2,t))
    P("s_mov_b32 s%d, %d"%(sT3,WS_FL+FL_F1))

def att_loads(P):
    t=aT
    P("v_lshlrev_b32 v%d, 4, v%d"%(aL16,vLANE))
    P("s_cmp_lt_u32 s%d, 4"%sW); P("s_cselect_b32 s%d, 0x40000000, 0"%sC)
    P("s_cmp_eq_u32 s%d, 0"%sQB); P("s_cselect_b32 s%d, s%d, 0"%(sC,sC))
    P("v_add_u32 v%d, s%d, v%d"%(t,sC,aL16))
    P("s_lshl_b32 s%d, s%d, 3"%(sC,sQB)); P("s_lshl_b32 s%d, s%d, 1"%(sD,sW)); P("s_add_u32 s%d, s%d, s%d"%(sC,sC,sD)); P("s_sub_u32 s%d, s%d, 8"%(sC,sC))
    P("s_add_u32 s%d, s%d, 32"%(sD,sHD)); P("s_lshl_b32 s%d, s%d, 6"%(sD,sD)); P("s_add_u32 s%d, s%d, s%d"%(sD,sD,sC)); P("s_lshl_b32 s%d, s%d, 10"%(sD,sD))
    P("s_add_u32 s%d, s%d, %d"%(sT0,sD,32*64*1024))
    P("s_lshl_b32 s%d, s%d, 11"%(sT1,sW))
    P("s_add_u32 m0, s%d, %d"%(sT1,LDS_K))
    P("buffer_load_dwordx4 v%d, %s, s%d offen sc1 lds"%(t,srd(S_WS),sD))
    P("buffer_load_dwordx4 v%d, %s, s%d offen offset:1024 sc1 lds"%(t,srd(S_WS),sD))
    P("s_mul_i32 s%d, s%d, %d"%(sT1,sW,2*VSTRIDE))
    P("s_add_u32 m0, s%d, %d"%(sT1,LDS_V))
    P("buffer_load_dwordx4 v%d, %s, s%d offen sc1 lds"%(t,srd(S_WS),sT0))
    P("s_add_u32 m0, s%d, %d"%(sT1,LDS_V+VSTRIDE)); P("s_add_u32 s%d, s%d, 1024"%(sT0,sT0))
    P("buffer_load_dwordx4 v%d, %s, s%d offen sc1 lds"%(t,srd(S_WS),sT0))
    P("s_lshl_b32 s%d, s%d, 6"%(sC,sHD)); P("s_lshl_b32 s%d, s%d, 3"%(sD,sQB)); P("s_add_u32 s%d, s%d, s%d"%(sC,sC,sD)); P("s_add_u32 s%d, s%d, s%d"%(sC,sC,sW)); P("s_lshl_b32 s%d, s%d, 10"%(sC,sC))
    P("buffer_load_dwordx4 %s, v%d, %s, s%d offen sc1"%(vr(aQ,4),aL16,srd(S_WS),sC), tag="kvq")

def att_setup(P):
    t=aT
    P("v_lshrrev_b32 v%d, 2, v%d"%(t,vLANE)); P("v_and_b32 v%d, 3, v%d"%(t+1,vLANE))
    P("v_mul_u32_u24 v%d, %d, v%d"%(t+2,VSTRIDE,t)); P("v_lshl_add_u32 v%d, v%d, 3, v%d"%(t+2,t+1,t+2)); P("v_add_u32 v%d, %d, v%d"%(t+2,LDS_V+1024,t+2))
    P("s_cmp_eq_u32 s%d, 0"%sQB); P("s_cselect_b32 s%d, 8, 0"%sC)
    P("v_cmp_le_u32 vcc, s%d, v%d"%(sC,t))
    P("v_mov_b32 v%d, 0x3f80"%(t+4)); P("v_cndmask_b32 v%d, 0, v%d, vcc"%(t+4,t+4))
    P("v_cmp_gt_u32 vcc, 2, v%d"%(t+1)); P("v_cndmask_b32 v%d, 0, v%d, vcc"%(t+4,t+4)); P("v_mov_b32 v%d, 0"%(t+5))
    P("ds_write_b64 v%d, %s"%(t+2,vr(t+4,2)))
    P("s_lshl_b32 s%d, s%d, 10"%(sC,sW)); P("s_add_u32 s%d, s%d, %d"%(sC,sC,LDS_K)); P("v_add_u32 v%d, s%d, v%d"%(aKA,sC,aL16))
    P("v_and_b32 v%d, 15, v%d"%(t,vLANE)); P("v_lshrrev_b32 v%d, 2, v%d"%(t,t))
    P("v_and_b32 v%d, 3, v%d"%(t+1,vLANE))
    P("v_lshrrev_b32 v%d, 5, v%d"%(t+2,vLANE))
    P("v_lshl_add_u32 v%d, v%d, 2, v%d"%(t+3,t+2,t)); P("v_lshlrev_b32 v%d, 4, v%d"%(t+3,t+3))
    P("v_and_b32 v%d, 1, v%d"%(t+4,t+1)); P("v_lshl_add_u32 v%d, v%d, 9, v%d"%(t+3,t+4,t+3))
    P("v_lshrrev_b32 v%d, 1, v%d"%(t+4,t+1)); P("v_lshl_add_u32 v%d, v%d, 3, v%d"%(t+3,t+4,t+3))
    P("v_lshlrev_b32 v%d, 3, v%d"%(t+4,t+1)); P("v_add_u32 v%d, 1024, v%d"%(t+4,t+4))
    P("s_mul_i32 s%d, s%d, %d"%(sC,sW,VSTRIDE)); P("s_add_u32 s%d, s%d, %d"%(sC,sC,LDS_V))
    P("v_lshrrev_b32 v%d, 4, v%d"%(t+5,vLANE)); P("v_and_b32 v%d, 1, v%d"%(t+5,t+5)); P("v_cmp_eq_u32 vcc, 1, v%d"%(t+5))
    for k in range(4):
        P("v_add_u32 v%d, %d, v%d"%(t+6,(k>>1)*256+(k&1)*128,t+3))
        P("v_cndmask_b32 v%d, v%d, v%d, vcc"%(t+6,t+6,t+4))
        P("v_add_u32 v%d, s%d, v%d"%(aVA+k,sC,t+6))
    P("v_and_b32 v%d, 31, v%d"%(t,vLANE)); P("v_lshlrev_b32 v%d, 2, v%d"%(t+2,t+2)); P("v_sub_u32 v%d, v%d, v%d"%(t,t,t+2))
    P("v_mov_b32 v%d, %s"%(t+1,hx(NEG)))
    for v in range(16):
        cv=8*(v//4)+v%4
        P("v_cmp_gt_i32 vcc, %d, v%d"%(cv,t))
        P("v_cndmask_b32 v%d, v%d, 0, vcc"%(aM0+v,t+1))
        P("v_cndmask_b32 v%d, 0, v%d, vcc"%(aM8+v,t+1))

def att_kread(j): return ["ds_read_b128 %s, v%d offset:%d"%(vr(aK+4*(j&1),4),aKA,j*1024)]
def att_vread(j):
    b=aV+8*(j&1)
    return ["ds_read_b64_tr_b16 %s, v%d offset:%d"%(vr(b+2*k,2),aVA+k,j*VSTRIDE) for k in range(4)]
def att_qk(j):
    C="0"
    if j==0: C=vr(aM0,16)
    if j==8: C=vr(aM8,16)
    return ["v_mfma_f32_32x32x16_bf16 %s, %s, %s, %s"%(vr(aS+16*(j&1),16),vr(aK+4*(j&1),4),vr(aQ,4),C)]
def att_main(P,cfg,hooks={}):
    emit(P,att_kread(0)+att_kread(1)+att_vread(0)+att_qk(0))
    for j in range(9):
        S=aS+16*(j&1); b=aV+8*(j&1)
        if j<8: emit(P,att_qk(j+1))
        if j<7: emit(P,att_kread(j+2))
        if j<8: emit(P,att_vread(j+1))
        for v in range(8): P("v_exp_f32 v%d, v%d"%(S+v,S+v))
        for k in range(4):
            P("v_cvt_pk_bf16_f32 v%d, v%d, v%d"%(S+k,S+2*k,S+2*k+1))
        for v in range(8,12): P("v_exp_f32 v%d, v%d"%(S+v,S+v))
        P("v_mfma_f32_32x32x16_bf16 %s, %s, %s, %s"%(vr(aO,16),vr(b,4),vr(S,4),"0" if j==0 else vr(aO,16)))
        for v in range(12,16): P("v_exp_f32 v%d, v%d"%(S+v,S+v))
        for k in range(4,8): P("v_cvt_pk_bf16_f32 v%d, v%d, v%d"%(S+k,S+2*k,S+2*k+1))
        P("v_mfma_f32_32x32x16_bf16 %s, %s, %s, %s"%(vr(aO,16),vr(b+4,4),vr(S+4,4),vr(aO,16)))
        if j in hooks: hooks[j](P)

def att_fallback(P):
    t=aT; R=P.raw
    L1=P.newlabel("L_fb1"); L2=P.newlabel("L_fb2")
    def qk_masked(lab):
        R("  ds_read_b128 %s, v%d"%(vr(aK,4),t)); R("  s_waitcnt lgkmcnt(0)")
        La=P.newlabel(lab+"a"); Lb=P.newlabel(lab+"b"); Lc=P.newlabel(lab+"c")
        R("  s_cmp_eq_u32 s%d, 0"%sT0); R("  s_cbranch_scc1 %s"%La)
        R("  s_cmp_eq_u32 s%d, 8"%sT0); R("  s_cbranch_scc1 %s"%Lb)
        R("  v_mfma_f32_32x32x16_bf16 %s, %s, %s, 0"%(vr(aS,16),vr(aK,4),vr(aQ,4))); R("  s_branch %s"%Lc)
        R("%s:"%La); R("  v_mfma_f32_32x32x16_bf16 %s, %s, %s, %s"%(vr(aS,16),vr(aK,4),vr(aQ,4),vr(aM0,16))); R("  s_branch %s"%Lc)
        R("%s:"%Lb); R("  v_mfma_f32_32x32x16_bf16 %s, %s, %s, %s"%(vr(aS,16),vr(aK,4),vr(aQ,4),vr(aM8,16)))
        R("%s:"%Lc); R("  s_nop 15")
    R("  s_sub_u32 s%d, 8, s%d"%(sT1,sW)); R("  s_cmp_eq_u32 s%d, 0"%sQB); R("  s_cselect_b32 s%d, s%d, 0"%(sT1,sT1))
    R("  s_mov_b32 s%d, s%d"%(sT0,sT1))
    R("  s_lshl_b32 s%d, s%d, 10"%(sT2,sT0)); R("  v_add_u32 v%d, s%d, v%d"%(t,sT2,aKA))
    R("  v_mov_b32 v%d, %s"%(t+1,hx(NEG)))
    R("%s:"%L1)
    qk_masked("L_fq1")
    for v in range(0,16,2): R("  v_max3_f32 v%d, v%d, v%d, v%d"%(t+1,aS+v,aS+v+1,t+1))
    R("  v_add_u32 v%d, 1024, v%d"%(t,t))
    R("  s_add_u32 s%d, s%d, 1"%(sT0,sT0)); R("  s_cmp_lt_u32 s%d, 9"%sT0); R("  s_cbranch_scc1 %s"%L1)
    R("  v_mov_b32 v%d, v%d"%(t+2,t+1)); R("  s_nop 1"); R("  v_permlane32_swap_b32 v%d, v%d"%(t+1,t+2)); R("  s_nop 1")
    R("  v_max_f32 v%d, v%d, v%d"%(t+1,t+1,t+2))
    for v in range(16): R("  v_mov_b32 v%d, 0"%(aO+v))
    R("  s_mov_b32 s%d, s%d"%(sT0,sT1))
    R("  s_lshl_b32 s%d, s%d, 10"%(sT2,sT0)); R("  v_add_u32 v%d, s%d, v%d"%(t,sT2,aKA))
    R("  s_mul_i32 s%d, s%d, %d"%(sT2,sT0,VSTRIDE))
    for k in range(4): R("  v_add_u32 v%d, s%d, v%d"%(t+3+k,sT2,aVA+k))
    R("%s:"%L2)
    qk_masked("L_fq2")
    for k in range(4): R("  ds_read_b64_tr_b16 %s, v%d"%(vr(aV+2*k,2),t+3+k))
    for v in range(16): R("  v_sub_f32 v%d, v%d, v%d"%(aS+v,aS+v,t+1))
    for v in range(16): R("  v_exp_f32 v%d, v%d"%(aS+v,aS+v))
    R("  s_nop 1")
    for k in range(8): R("  v_cvt_pk_bf16_f32 v%d, v%d, v%d"%(aS+k,aS+2*k,aS+2*k+1))
    R("  s_waitcnt lgkmcnt(0)"); R("  s_nop 1")
    R("  v_mfma_f32_32x32x16_bf16 %s, %s, %s, %s"%(vr(aO,16),vr(aV,4),vr(aS,4),vr(aO,16)))
    R("  v_mfma_f32_32x32x16_bf16 %s, %s, %s, %s"%(vr(aO,16),vr(aV+4,4),vr(aS+4,4),vr(aO,16)))
    R("  v_add_u32 v%d, 1024, v%d"%(t,t))
    for k in range(4): R("  v_add_u32 v%d, %d, v%d"%(t+3+k,VSTRIDE,t+3+k))
    R("  s_add_u32 s%d, s%d, 1"%(sT0,sT0)); R("  s_cmp_lt_u32 s%d, 9"%sT0); R("  s_cbranch_scc1 %s"%L2)
    R("  s_nop 15")

def att(P,cfg):
    t=aT
    att_indices(P)
    att_f1_addr(P)
    poll_issue(P,aPA,aPOLL,12,sT3,"f1")
    att_setup_pre=None
    P.wait_vm("f1")
    poll(P,aPA,aPOLL,12,sT3,cfg)
    stamp(P,cfg,"F1 ok")
    att_loads(P)
    att_setup(P)
    P.wait_lgkm0(); P.wait_vm("kvq")
    P("s_barrier")
    stamp(P,cfg,"KV landed")
    L=P.newlabel("L_nof2")
    P("s_cmp_lg_u32 s%d, 0"%sW); P("s_cbranch_scc1 %s"%L)
    P("s_lshl_b32 s%d, s%d, 8"%(sC,sTB)); P("s_lshl_b32 s%d, s%d, 4"%(sD,sG)); P("s_add_u32 s%d, s%d, s%d"%(sC,sC,sD))
    P("s_lshl_b32 s%d, s%d, 2"%(sD,sJ)); P("s_add_u32 s%d, s%d, s%d"%(sC,sC,sD)); P("s_add_u32 s%d, s%d, %d"%(sC,sC,WS_FL+FL_F2))
    P("v_mov_b32 v%d, 1"%t); P("v_mov_b32 v%d, 0"%(t+1))
    P("s_mov_b64 exec, 1")
    P.raw("  buffer_store_dword v%d, v%d, %s, s%d offen sc1"%(t,t+1,srd(S_WS),sC))
    P("s_mov_b64 exec, -1")
    P.label(L)
    hooks={}
    if cfg.stop_after is None: hooks=g2_att_hooks(cfg)
    att_main(P,cfg,hooks)
    Lok=P.newlabel("L_attok")
    P("v_cmp_gt_f32 vcc, v%d, %s"%(aO+8,"v%d"%t)) if False else None
    P("v_mov_b32 v%d, %s"%(t,hx(f32(2.0**-30)))); P("v_mov_b32 v%d, %s"%(t+1,hx(f32(2.0**30))))
    P("v_cmp_gt_f32 vcc, v%d, v%d"%(aO+8,t)); P("v_cmp_lt_f32 s[%d:%d], v%d, v%d"%(sT0,sT1,aO+8,t+1))
    P("s_and_b64 vcc, vcc, s[%d:%d]"%(sT0,sT1)); P("s_cmp_eq_u64 vcc, -1")
    if getattr(cfg,'force_fallback',False): P("s_cmp_eq_u32 0, 1")
    P("s_cbranch_scc1 %s"%Lok)
    P.fence()
    att_fallback(P)
    P.label(Lok)
    P("v_rcp_f32 v%d, v%d"%(t,aO+8))
    for v in range(8): P("v_mul_f32 v%d, v%d, v%d"%(aO+v,aO+v,t))
    for k in range(4): P("v_cvt_pk_bf16_f32 v%d, v%d, v%d"%(aO+k,aO+2*k,aO+2*k+1))
    P("s_lshl_b32 s%d, s%d, 3"%(sC,sQB)); P("s_add_u32 s%d, s%d, s%d"%(sC,sC,sW)); P("s_lshl_b32 s%d, s%d, 5"%(sC,sC)); P("s_add_u32 s%d, s%d, s%d"%(sC,sC,sHD))
    P("s_lshl_b32 s%d, s%d, 10"%(sC,sC)); P("s_add_u32 s%d, s%d, %d"%(sC,sC,WS_O))
    P("buffer_store_dwordx4 %s, v%d, %s, s%d offen sc1"%(vr(aO,4),aL16,srd(S_WS),sC), tag="o")
    stamp(P,cfg,"ATT done")

gWB=60; gWOB=61; gHB=62; gOB=63; gW2K=64; gFL=65
gWV=18
gHA=2; gWA=3; gHF=20; gWF=28; gG=36; gS=52; gB2=68; gX=72; gPA=76; gPOLL=77; gXA=78; gT=82; gL16=252
LDS_XG=0; LDS_XS=16384; LDS_PT=32768; PTP=144
def g2_indices(P):
    t=vT
    P("s_lshl_b32 s%d, s%d, 2"%(sT2B,sXCD)); P("s_lshr_b32 s%d, s%d, 3"%(sC,sSLOT)); P("s_add_u32 s%d, s%d, s%d"%(sT2B,sT2B,sC))
    P("s_and_b32 s%d, s%d, 7"%(sC2,sSLOT))
    P("s_lshr_b32 s%d, s%d, 2"%(sC,sW))
    P("s_lshl_b32 s%d, s%d, 7"%(sD,sC2))
    P("s_mul_i32 s%d, s%d, %d"%(gWB,sC,896*1024)); P("s_add_u32 s%d, s%d, s%d"%(gWB,gWB,sD))
    P("s_mul_i32 s%d, s%d, %d"%(gWOB,sC,256*1024)); P("s_add_u32 s%d, s%d, s%d"%(gWOB,gWOB,sD))
    P("s_lshr_b32 s%d, s%d, 1"%(sD,sW)); P("s_and_b32 s%d, s%d, 1"%(sD,sD)); P("s_lshl_b32 s%d, s%d, 1"%(gHB,sT2B)); P("s_add_u32 s%d, s%d, s%d"%(sD,sD,gHB))
    P("s_and_b32 s%d, s%d, 1"%(gW2K,sW)); P("s_lshl_b32 s%d, s%d, 1"%(gW2K,gW2K))
    P("s_mul_i32 s%d, s%d, 112"%(gHB,sD)); P("s_add_u32 s%d, s%d, s%d"%(gHB,gHB,gW2K))
    P("s_mul_i32 s%d, s%d, 56"%(gOB,sC)); P("s_add_u32 s%d, s%d, s%d"%(gHB,gHB,gOB)); P("s_lshl_b32 s%d, s%d, 10"%(gHB,gHB)); P("s_add_u32 s%d, s%d, %d"%(gHB,gHB,WS_H))
    P("s_lshl_b32 s%d, s%d, 5"%(gOB,sD)); P("s_add_u32 s%d, s%d, s%d"%(gOB,gOB,gW2K)); P("s_lshl_b32 s%d, s%d, 4"%(sC,sC)); P("s_add_u32 s%d, s%d, s%d"%(gOB,gOB,sC))
    P("s_lshl_b32 s%d, s%d, 10"%(gOB,gOB)); P("s_add_u32 s%d, s%d, %d"%(gOB,gOB,WS_O))
    P("s_lshl_b32 s%d, s%d, 11"%(gW2K,sW))
    P("v_lshrrev_b32 v%d, 3, v%d"%(t,vLANE)); P("v_and_b32 v%d, 7, v%d"%(t+1,vLANE))
    P("v_lshrrev_b32 v%d, 1, v%d"%(t+2,t)); P("v_and_b32 v%d, 1, v%d"%(t+2,t+2)); P("v_lshlrev_b32 v%d, 2, v%d"%(t+2,t+2))
    P("v_xor_b32 v%d, v%d, v%d"%(t+1,t+1,t+2)); P("v_lshlrev_b32 v%d, 4, v%d"%(t+1,t+1))
    P("s_and_b32 s%d, s%d, 3"%(sC,sW)); P("s_lshl_b32 s%d, s%d, 4"%(sC,sC)); P("v_add_u32 v%d, s%d, v%d"%(t,sC,t))
    P("v_lshl_add_u32 v%d, v%d, 10, v%d"%(gWV,t,t+1))
def g2_dma_w(P,st):
    slot=LDS_WR+(st&3)*16384
    for p in range(2):
        P("s_add_u32 m0, s%d, %d"%(gW2K,slot+p*1024))
        if st<14:
            P("s_add_u32 s%d, s%d, %d"%(sC,gWB,(64*st+8*p)*1024))
            P("buffer_load_dwordx4 v%d, %s, s%d offen lds"%(gWV,srd(S_W2),sC), tag="W%d"%st)
        else:
            P("s_add_u32 s%d, s%d, %d"%(sC,gWOB,(64*(st-14)+8*p)*1024))
            P("buffer_load_dwordx4 v%d, %s, s%d offen lds"%(gWV,srd(S_WO),sC), tag="W%d"%st)
def g2_dma_h(P,st):
    slot=LDS_HR+(st%3)*16384
    P("s_add_u32 m0, s%d, %d"%(gW2K,slot))
    if st<14: P("s_add_u32 s%d, s%d, %d"%(sC,gHB,st*4096))
    else: P("s_add_u32 s%d, s%d, %d"%(sC,gOB,(st-14)*4096))
    P("buffer_load_dwordx4 v%d, %s, s%d offen sc1 lds"%(gL16,srd(S_WS),sC))
    P("buffer_load_dwordx4 v%d, %s, s%d offen offset:1024 sc1 lds"%(gL16,srd(S_WS),sC), tag="H%d"%st)
def g2_dma_w_prefetch(P):
    g2_indices(P)
    for st in range(4): g2_dma_w(P,st)
def g2_att_hooks(cfg):
    def h2(P):
        P("v_lshlrev_b32 v%d, 2, v%d"%(aPA,vLANE))
        P("s_lshr_b32 s%d, s%d, 1"%(sC,sT2B)); P("s_lshl_b32 s%d, s%d, 8"%(sC,sC)); P("s_add_u32 s%d, s%d, %d"%(gFL,sC,WS_FL+FL_F2))
        poll_issue(P,aPA,aPOLL,16,gFL,"f2")
    def h5(P):
        P.wait_vm("f2"); poll(P,aPA,aPOLL,16,gFL,cfg)
        for st in range(3): g2_dma_h(P,st)
    return {2:h2,5:h5}
def g2_reads(st,i):
    b=4*(i&1)
    return ["ds_read_b128 %s, v%d offset:%d"%(vr(gHF+b,4),gHA,(st%3)*16384+i*1024),
            "ds_read_b64_tr_b16 %s, v%d offset:%d"%(vr(gWF+b,2),gWA,(st&3)*16384+i*2048),
            "ds_read_b64_tr_b16 %s, v%d offset:%d"%(vr(gWF+b+2,2),gWA,(st&3)*16384+i*2048+1024)]
def g2_mfma(st,i):
    b=4*(i&1); acc=gG if st<14 else gS
    first=(st in (0,14) and i==0)
    return ["v_mfma_f32_32x32x16_bf16 %s, %s, %s, %s"%(vr(acc,16),vr(gWF+b,4),vr(gHF+b,4),"0" if first else vr(acc,16))]
def g2_xchg_write(P,acc,base):
    La=P.newlabel("L_xa"); Lb=P.newlabel("L_xb")
    P("s_cmp_ge_u32 s%d, 4"%sW); P("s_cbranch_scc1 %s"%La)
    P.save_state("x")
    P("ds_write_b128 v%d, %s offset:%d"%(gXA,vr(acc+8,4),base)); P("ds_write_b128 v%d, %s offset:%d"%(gXA,vr(acc+12,4),base+1024))
    P.wait_lgkm0()
    P("s_branch %s"%Lb)
    P.label(La); P.restore_state("x")
    P("ds_write_b128 v%d, %s offset:%d"%(gXA,vr(acc,4),base)); P("ds_write_b128 v%d, %s offset:%d"%(gXA,vr(acc+4,4),base+1024))
    P.wait_lgkm0()
    for v in range(8): P("v_mov_b32 v%d, v%d"%(acc+v,acc+8+v))
    P.label(Lb)
def g2(P,cfg):
    t=gT
    P("s_and_b32 s%d, s%d, 1"%(sC,sW)); P("s_lshl_b32 s%d, s%d, 12"%(sC,sC))
    P("s_lshr_b32 s%d, s%d, 2"%(sD,sW)); P("s_lshl_b32 s%d, s%d, 13"%(sD,sD))
    P("s_add_u32 s%d, s%d, s%d"%(sC,sC,sD)); P("s_add_u32 s%d, s%d, %d"%(sC,sC,LDS_HR))
    P("v_add_u32 v%d, s%d, v%d"%(gHA,sC,gL16))
    P("v_and_b32 v%d, 15, v%d"%(t,vLANE)); P("v_lshrrev_b32 v%d, 2, v%d"%(t,t))
    P("v_and_b32 v%d, 3, v%d"%(t+1,vLANE))
    P("v_lshrrev_b32 v%d, 4, v%d"%(t+2,vLANE)); P("v_and_b32 v%d, 1, v%d"%(t+2,t+2)); P("v_lshlrev_b32 v%d, 1, v%d"%(t+2,t+2))
    P("v_lshrrev_b32 v%d, 1, v%d"%(t+3,t+1)); P("v_add_u32 v%d, v%d, v%d"%(t+2,t+2,t+3))
    P("s_lshr_b32 s%d, s%d, 1"%(sC,sW)); P("s_and_b32 s%d, s%d, 1"%(sC,sC)); P("s_lshl_b32 s%d, s%d, 2"%(sT0,sC))
    P("v_add_u32 v%d, s%d, v%d"%(t+2,sT0,t+2))
    P("v_lshrrev_b32 v%d, 1, v%d"%(t+3,t)); P("v_lshlrev_b32 v%d, 2, v%d"%(t+3,t+3)); P("v_xor_b32 v%d, v%d, v%d"%(t+2,t+2,t+3))
    P("v_lshlrev_b32 v%d, 4, v%d"%(t+2,t+2)); P("v_and_b32 v%d, 1, v%d"%(t+3,t+1)); P("v_lshl_add_u32 v%d, v%d, 3, v%d"%(t+2,t+3,t+2))
    P("v_lshrrev_b32 v%d, 5, v%d"%(t+4,vLANE))
    P("v_lshl_add_u32 v%d, v%d, 2, v%d"%(t+3,t+4,t)); P("v_lshl_add_u32 v%d, v%d, 7, v%d"%(t+2,t+3,t+2))
    P("s_add_u32 s%d, s%d, %d"%(sD,sD,LDS_WR)); P("v_add_u32 v%d, s%d, v%d"%(gWA,sD,t+2))
    P("v_add_u32 v%d, s%d, v%d"%(gXA,gW2K,gL16))
    P("s_xor_b32 s%d, s%d, 8192"%(sD,gW2K)); P("v_add_u32 v%d, s%d, v%d"%(gXA+1,sD,gL16))
    P("s_lshl_b32 s%d, s%d, 6"%(sD,sC2)); P("s_lshl_b32 s%d, s%d, 5"%(sC,sC)); P("s_add_u32 s%d, s%d, s%d"%(sD,sD,sC))
    P("s_lshr_b32 s%d, s%d, 2"%(sC,sW)); P("s_lshl_b32 s%d, s%d, 4"%(sC,sC)); P("s_add_u32 s%d, s%d, s%d"%(sD,sD,sC))
    P("v_lshlrev_b32 v%d, 2, v%d"%(t+3,t+4)); P("v_add_u32 v%d, s%d, v%d"%(t+3,sD,t+3)); P("v_lshlrev_b32 v%d, 1, v%d"%(t+3,t+3))
    P.wait_vm("H0")
    P("s_barrier")
    stamp(P,cfg,"G2 start")
    P("global_load_dwordx2 %s, v%d, s[%d:%d]"%(vr(gB2,2),t+3,S_B2,S_B2+1))
    P("global_load_dwordx2 %s, v%d, s[%d:%d] offset:16"%(vr(gB2+2,2),t+3,S_B2,S_B2+1))
    P("v_lshrrev_b32 v%d, 3, v%d"%(t,vLANE)); P("s_lshl_b32 s%d, s%d, 3"%(sC,sW)); P("v_add_u32 v%d, s%d, v%d"%(t,sC,t)); P("v_lshlrev_b32 v%d, 10, v%d"%(t,t))
    P("v_and_b32 v%d, 7, v%d"%(t+1,vLANE)); P("v_lshl_add_u32 v%d, v%d, 4, v%d"%(gXA+1+1,t+1,t))
    P("s_lshl_b32 s%d, s%d, 16"%(sT1,sT2B)); P("s_lshl_b32 s%d, s%d, 7"%(sC,sC2)); P("s_add_u32 s%d, s%d, s%d"%(sT1,sT1,sC))
    P("buffer_load_dwordx4 %s, v%d, %s, s%d offen"%(vr(gX,4),gXA+2,srd(S_X),sT1))
    emit(P,g2_reads(0,0))
    for st in range(18):
        for i in range(3):
            emit(P,g2_reads(st,i+1)); emit(P,g2_mfma(st,i))
        P.wait_lgkm0()
        if st<17:
            P.wait_vm("H%d"%(st+1)); P.wait_vm("W%d"%(st+1))
            if st==1: P.wait_vm("o")
            P("s_barrier")
            if st in (1,5,9,13): stamp(P,cfg,"G2 bar%d"%st)
            if st==1:
                L=P.newlabel("L_nof3")
                P("s_cmp_lg_u32 s%d, 0"%sW); P("s_cbranch_scc1 %s"%L)
                P("s_lshl_b32 s%d, s%d, 8"%(sC,sQB)); P("s_lshl_b32 s%d, s%d, 2"%(sD,sHD)); P("s_add_u32 s%d, s%d, s%d"%(sC,sC,sD)); P("s_add_u32 s%d, s%d, %d"%(sC,sC,WS_FL+FL_F3))
                P("v_mov_b32 v%d, 1"%t); P("v_mov_b32 v%d, 0"%(t+1))
                P("s_mov_b64 exec, 1")
                P.raw("  buffer_store_dword v%d, v%d, %s, s%d offen sc1"%(t,t+1,srd(S_WS),sC))
                P("s_mov_b64 exec, -1")
                P.label(L)
            if st==8:
                P("v_lshlrev_b32 v%d, 2, v%d"%(gPA,vLANE))
                P("s_lshr_b32 s%d, s%d, 2"%(sC,sT2B)); P("s_lshl_b32 s%d, s%d, 8"%(sC,sC)); P("s_add_u32 s%d, s%d, %d"%(gFL,sC,WS_FL+FL_F3))
                poll_issue(P,gPA,gPOLL,32,gFL,"f3")
            if st==11:
                P.wait_vm("f3"); poll(P,gPA,gPOLL,32,gFL,cfg)
            if st+3<18: g2_dma_h(P,st+3)
            if st+4<18: g2_dma_w(P,st+4)
            emit(P,g2_reads(st+1,0))
        emit(P,g2_mfma(st,3))
        if st==13:
            g2_xchg_write(P,gG,LDS_XG)
        if st==14:
            pass
    stamp(P,cfg,"G2 loop done")
    P("ds_read_b128 %s, v%d offset:%d"%(vr(t,4),gXA+1,LDS_XG)); P("ds_read_b128 %s, v%d offset:%d"%(vr(t+4,4),gXA+1,LDS_XG+1024))
    g2_xchg_write(P,gS,LDS_XS)
    for v in range(8): P("v_add_f32 v%d, v%d, v%d"%(gG+v,gG+v,t+v))
    P("s_barrier")
    P("ds_read_b128 %s, v%d offset:%d"%(vr(t,4),gXA+1,LDS_XS)); P("ds_read_b128 %s, v%d offset:%d"%(vr(t+4,4),gXA+1,LDS_XS+1024))
    u=t+8
    for k in range(4):
        P("v_lshlrev_b32 v%d, 16, v%d"%(u+2*k,gB2+k)); P("v_and_b32 v%d, s%d, v%d"%(u+2*k+1,sMASKHI,gB2+k))
    for v in range(8): P("v_add_f32 v%d, v%d, v%d"%(gG+v,gG+v,u+v))
    for v in range(8): P("v_mul_f32 v%d, %s, v%d"%(u+v,hx(f32(-1.4426950408889634)),gG+v))
    for v in range(8): P("v_exp_f32 v%d, v%d"%(u+v,u+v))
    for v in range(8): P("v_add_f32 v%d, 1.0, v%d"%(u+v,u+v))
    for v in range(8): P("v_rcp_f32 v%d, v%d"%(u+v,u+v))
    for v in range(8): P("v_mul_f32 v%d, v%d, v%d"%(gG+v,gG+v,u+v))
    for v in range(8): P("v_add_f32 v%d, v%d, v%d"%(gS+v,gS+v,t+v))
    for v in range(8): P("v_mul_f32 v%d, v%d, v%d"%(gS+v,gS+v,gG+v))
    for k in range(4): P("v_cvt_pk_bf16_f32 v%d, v%d, v%d"%(gS+k,gS+2*k,gS+2*k+1))
    P("v_and_b32 v%d, 31, v%d"%(t,vLANE)); P("s_and_b32 s%d, s%d, 1"%(sC,sW)); P("s_lshl_b32 s%d, s%d, 5"%(sC,sC)); P("v_add_u32 v%d, s%d, v%d"%(t,sC,t))
    P("v_mul_u32_u24 v%d, %d, v%d"%(t,PTP,t))
    P("s_lshr_b32 s%d, s%d, 1"%(sC,sW)); P("s_and_b32 s%d, s%d, 1"%(sC,sC)); P("s_lshl_b32 s%d, s%d, 6"%(sC,sC))
    P("s_lshr_b32 s%d, s%d, 2"%(sD,sW)); P("s_lshl_b32 s%d, s%d, 5"%(sD,sD)); P("s_add_u32 s%d, s%d, s%d"%(sC,sC,sD)); P("s_add_u32 s%d, s%d, %d"%(sC,sC,LDS_PT))
    P("v_lshrrev_b32 v%d, 5, v%d"%(t+1,vLANE)); P("v_lshl_add_u32 v%d, v%d, 3, v%d"%(t,t+1,t)); P("v_add_u32 v%d, s%d, v%d"%(t,sC,t))
    P("ds_write_b64 v%d, %s"%(t,vr(gS,2))); P("ds_write_b64 v%d, %s offset:16"%(t,vr(gS+2,2)))
    P("v_lshrrev_b32 v%d, 3, v%d"%(t+2,vLANE)); P("s_lshl_b32 s%d, s%d, 3"%(sC,sW)); P("v_add_u32 v%d, s%d, v%d"%(t+2,sC,t+2)); P("v_mul_u32_u24 v%d, %d, v%d"%(t+2,PTP,t+2))
    P("v_and_b32 v%d, 7, v%d"%(t+3,vLANE)); P("v_lshl_add_u32 v%d, v%d, 4, v%d"%(t+2,t+3,t+2)); P("v_add_u32 v%d, %d, v%d"%(t+2,LDS_PT,t+2))
    P.wait_lgkm0()
    P("s_barrier")
    P("ds_read_b128 %s, v%d"%(vr(t+4,4),t+2))
    for k in range(4):
        P("v_lshlrev_b32 v%d, 16, v%d"%(u+2*k,gX+k)); P("v_and_b32 v%d, s%d, v%d"%(u+2*k+1,sMASKHI,gX+k))
    for k in range(4):
        P("v_lshlrev_b32 v%d, 16, v%d"%(gG+2*k,t+4+k)); P("v_and_b32 v%d, s%d, v%d"%(gG+2*k+1,sMASKHI,t+4+k))
    for v in range(8): P("v_add_f32 v%d, v%d, v%d"%(u+v,u+v,gG+v))
    for k in range(4): P("v_cvt_pk_bf16_f32 v%d, v%d, v%d"%(u+k,u+2*k,u+2*k+1))
    P("buffer_store_dwordx4 %s, v%d, %s, s%d offen"%(vr(u,4),gXA+2,srd(S_OUT),sT1))
    stamp(P,cfg,"end")

def build(cfg):
    P=Prog()
    setup(P,cfg)
    p1(P,cfg)
    if cfg.stop_after!='p1': att(P,cfg)
    if cfg.stop_after is None: g2(P,cfg)
    stamp_flush(P,cfg)
    if getattr(cfg,'dbgtime',False):
        L=P.newlabel("L_nodbg")
        P("s_cmp_lg_u32 s%d, 0"%sW); P("s_cbranch_scc1 %s"%L); P("s_cmp_ge_u32 s2, 6"); P("s_cbranch_scc1 %s"%L)
        P("s_memrealtime s[66:67]"); P("s_memtime s[68:69]"); P("s_waitcnt lgkmcnt(0)")
        P("s_sub_u32 s66, s66, s70"); P("s_sub_u32 s68, s68, s72")
        P("v_mov_b32 v2, s66"); P("v_mov_b32 v3, s68"); P("s_lshl_b32 s66, s2, 3"); P("s_add_u32 s66, s66, 8"); P("v_mov_b32 v4, s66")
        P("s_mov_b64 exec, 1")
        P("global_store_dwordx2 v4, v[2:3], s[%d:%d]"%(S_DBG,S_DBG+1))
        P("s_mov_b64 exec, -1")
        P.label(L)
    P.wait_vm0()
    P.label("L_end")
    P("s_endpgm")
    body=P.finalize()
    hdr=open("recurrent_scan__sliding_block__mixer_channel_mlp__prompt.s.ref").read().split("; Override")[0]
    s=hdr+"; Generated by my own generator script (work/gen.py).\n"
    s+="; @launch grid=(256,1,1) block=(512,1,1) lds=%d\n"%LDS_TOTAL
    s+='.amdgcn_target "amdgcn-amd-amdhsa--gfx950"\n.text\n.globl %s\n.p2align 8\n.type %s,@function\n%s:\n'%(KNAME,KNAME,KNAME)
    s+=body
    s+='.section .rodata,"a"\n.p2align 6\n.amdhsa_kernel %s\n  .amdhsa_next_free_vgpr 256\n  .amdhsa_next_free_sgpr 102\n  .amdhsa_accum_offset 256\n  .amdhsa_group_segment_fixed_size 0\n  .amdhsa_kernarg_size 88\n  .amdhsa_user_sgpr_count 2\n  .amdhsa_user_sgpr_kernarg_segment_ptr 1\n  .amdhsa_system_sgpr_workgroup_id_x 1\n.end_amdhsa_kernel\n'%KNAME
    return s,P.stats

if __name__=="__main__":
    cfg=Cfg()
    out=sys.argv[1] if len(sys.argv)>1 else "k.s"
    for a in sys.argv[2:]:
        k,v=a.split("=")
        setattr(cfg,k,{"0":False,"1":True,"None":None}.get(v,v))
    s,st=build(cfg)
    open(out,"w").write(s)
    if cfg.stamps:
        import json; json.dump(STAMPS,open(out.replace(".s",".json"),"w"))
    print(out,len(s),"bytes",st)
```

```python
import re
REG_RE = re.compile(r'(?<![\w.])([vsa])\[(\d+):(\d+)\]|(?<![\w.])([vsa])(\d+)(?![\w\[])|(?<![\w.])(vcc|exec|m0|scc)(?![\w])')
def regs_of(s):
    out=[]
    for m in REG_RE.finditer(s):
        if m.group(1):
            for i in range(int(m.group(2)), int(m.group(3))+1): out.append((m.group(1), i))
        elif m.group(4): out.append((m.group(4), int(m.group(5))))
        else: out.append((m.group(6),0))
    return out
TRANS = ("v_exp_f32","v_log_f32","v_rcp_f32","v_rsq_f32","v_sqrt_f32","v_sin_f32","v_cos_f32")
class Ins:
    __slots__=("text","op","kind","defs","uses","tag","passes","wide_store","attrs")
    def __init__(self, text):
        self.text=text; self.tag=None; self.passes=0; self.wide_store=False; self.attrs={}
        t=text.split(";")[0].strip()
        if t.endswith(":"):
            self.op=t; self.kind="label"; self.defs=set(); self.uses=set(); return
        if t=="" or t.startswith("."):
            self.op=t; self.kind="dir"; self.defs=set(); self.uses=set(); return
        sp=t.split(None,1); op=sp[0]; rest=sp[1] if len(sp)>1 else ""
        self.op=op
        ops=[o.strip() for o in self._split(rest)]
        R=[regs_of(o) for o in ops]
        allr=[r for x in R for r in x]
        d=set(); u=set()
        base=op
        for suf in ("_e32","_e64","_dpp","_sdwa"):
            if base.endswith(suf): base=base[:-len(suf)]
        if op.startswith("v_mfma"):
            self.kind="mfma"; d=set(R[0]); u=set(r for x in R[1:] for r in x)
            self.passes = 8 if "32x32x16" in op else (4 if "16x16x32" in op else (2 if "4x4x4" in op else 16))
            self.attrs["A"]=set(R[1]); self.attrs["B"]=set(R[2]); self.attrs["C"]=set(R[3]) if len(R)>3 else set()
            self.attrs["Clist"]=list(R[3]) if len(R)>3 else []; self.attrs["Dlist"]=list(R[0])
        elif op.startswith("v_cmp"):
            self.kind="valu"; d=set(R[0]); u=set(r for x in R[1:] for r in x)
            if op.startswith("v_cmpx"): d.add(("exec",0))
        elif base in ("v_readfirstlane_b32","v_readlane_b32"):
            self.kind="valu"; d=set(R[0]); u=set(r for x in R[1:] for r in x); self.attrs["readlane"]=True
        elif base.startswith("v_permlane") :
            self.kind="valu"; d=set(R[0])|set(R[1]); u=set(d); self.attrs["permlane"]=True
        elif op.startswith("v_"):
            self.kind="trans" if base in TRANS else "valu"
            d=set(R[0]); u=set(r for x in R[1:] for r in x)
            if base in ("v_fmac_f32","v_dot2c_f32_bf16","v_writelane_b32") or "UNUSED_PRESERVE" in text: u|=set(R[0])
            if op.endswith("_dpp") or "row_" in rest or "quad_perm" in rest: self.attrs["dpp"]=True
            if base in ("v_add_co_u32","v_addc_co_u32","v_sub_co_u32"): d|=set(R[1]);
            if base.startswith("v_dot2"):
                self.attrs["isdot"]=True; self.attrs["dotC"]=set(R[3]) if len(R)>3 else set(R[0])
        elif op.startswith("ds_read") or op.startswith("ds_bpermute") or op.startswith("ds_swizzle"):
            self.kind="ds_read"; d=set(R[0]); u=set(r for x in R[1:] for r in x)
        elif op.startswith("ds_"):
            self.kind="ds_write"; u=set(allr)
        elif op.startswith("buffer_load") or op.startswith("global_load"):
            if re.search(r'\blds\b', rest) or "_lds_" in op:
                self.kind="vm_dma"; u=set(allr); u.add(("m0",0))
            else:
                self.kind="vm_load"; d=set(R[0]); u=set(r for x in R[1:] for r in x)
        elif op.startswith("buffer_store") or op.startswith("global_store"):
            self.kind="vm_store"; u=set(allr)
            if "x4" in op or "x3" in op:
                self.wide_store=True
                self.attrs["data"]=set(R[0]) if op.startswith("buffer_store") else set(R[1])
        elif op.startswith("global_atomic") or op.startswith("buffer_atomic"):
            self.kind="vm_store"; u=set(allr)
            if "sc0" in rest: self.kind="vm_load"; d=set(R[0]); u=set(r for x in R[1:] for r in x)
        elif op.startswith("buffer_wbl2") or op.startswith("buffer_inv"):
            self.kind="vm_store"
        elif op.startswith("s_load") or op in ("s_memtime","s_memrealtime"):
            self.kind="smem"; d=set(R[0]); u=set(r for x in R[1:] for r in x)
        elif op=="s_waitcnt": self.kind="wait"
        elif op=="s_barrier": self.kind="barrier"
        elif op=="s_nop": self.kind="nop"; self.attrs["n"]=int(rest)+1
        elif op.startswith("s_cbranch") or op=="s_branch":
            self.kind="branch"
        elif op=="s_endpgm": self.kind="end"
        elif op.startswith("s_cmp") or op.startswith("s_bitcmp"):
            self.kind="salu"; d={("scc",0)}; u=set(allr)
        elif op in ("s_setprio","s_sleep"):
            self.kind="salu"
        elif op.startswith("s_"):
            self.kind="salu"; d=set(R[0]) if R else set(); u=set(r for x in R[1:] for r in x)
            if "saveexec" in op: d.add(("exec",0)); u.add(("exec",0))
            if op.startswith("s_cselect") or op.startswith("s_addc") or op.startswith("s_subb"): u.add(("scc",0))
            if op in("s_addk_i32","s_mulk_i32"): u|=d
        else:
            raise ValueError("unknown instruction: "+text)
        self.defs=d; self.uses=u
    @staticmethod
    def _split(s):
        out=[];depth=0;cur=""
        for ch in s:
            if ch in "[(": depth+=1
            if ch in "])": depth-=1
            if ch=="," and depth==0: out.append(cur); cur=""
            else: cur+=ch
        if cur.strip(): out.append(cur)
        return out

def isv(r): return r[0] in ("v","a")

class Prog:
    def __init__(self):
        self.ins=[]
        self._lab=0
    def __call__(self, s, tag=None):
        last=None
        for l in s.split("\n"):
            if l.strip()=="" : continue
            i=Ins(l.strip()); self.ins.append(i); last=i
        if tag is not None: last.tag=tag
        return last
    def label(self,n): self.ins.append(Ins(n+":"))
    def newlabel(self,b="L"):
        self._lab+=1; return "%s_%d"%(b,self._lab)
    def comment(self,s):
        i=Ins(".dummy"); i.text="; "+s; i.kind="comment"; self.ins.append(i)
    def wait_vm(self, tag, also_lgkm=False):
        i=Ins("s_waitcnt vmcnt(0)"); i.kind="wait_vm_tag"; i.attrs["wtag"]=tag; self.ins.append(i)
    def wait_lgkm0(self):
        i=Ins("s_waitcnt lgkmcnt(0)"); i.kind="wait_lgkm0"; self.ins.append(i)
    def wait_vm0(self):
        i=Ins("s_waitcnt vmcnt(0)"); i.kind="wait_vm0"; self.ins.append(i)
    def raw(self, text):
        i=Ins(".dummy"); i.text=text; i.kind="raw"; self.ins.append(i)
    def fence(self):
        i=Ins(".dummy"); i.text="; fence"; i.kind="fence"; self.ins.append(i)
    def save_state(self,name):
        i=Ins(".dummy"); i.text="; save "+name; i.kind="save"; i.attrs["name"]=name; self.ins.append(i)
    def restore_state(self,name):
        i=Ins(".dummy"); i.text="; restore "+name; i.kind="restore"; i.attrs["name"]=name; self.ins.append(i)
    def merge_state(self,name):
        i=Ins(".dummy"); i.text="; merge "+name; i.kind="merge"; i.attrs["name"]=name; self.ins.append(i)

    def finalize(self):
        out=[]
        lg=[]
        vms=[[]]
        hist=[]
        saved={}
        stats={"nop":0,"lgkm":0,"vm":0}
        def emit(i):
            out.append(i)
            n = i.attrs.get("n",1) if i.kind=="nop" else 1
            if i.kind in ("comment","dir","label","fence","save","restore","merge"): n=0
            for h in hist: h[1]+=n
            while hist and hist[0][1]>24: hist.pop(0)
            if i.kind in ("valu","trans","mfma","salu","vm_store"): hist.append([i,0])
        def need_nops(c):
            need=0
            cu=c.uses; cd=c.defs
            for (p,dist) in hist:
                req=0
                if p.kind in("valu","trans"):
                    pv={r for r in p.defs if isv(r)}
                    ps={r for r in p.defs if not isv(r)}
                    if c.kind=="mfma" and pv & cu: req=max(req,2)
                    if p.attrs.get("isdot") and (pv & (cu|cd)):
                        if not (c.attrs.get("isdot") and c.op==p.op and (pv & cu)<=c.attrs["dotC"] and not (pv & (cu-c.attrs["dotC"]))): req=max(req,3)
                    if c.attrs.get("permlane") and pv & cu: req=max(req,2)
                    if c.attrs.get("dpp") and pv & cu: req=max(req,2)
                    if c.attrs.get("readlane") and pv & cu: req=max(req,1)
                    if p.kind=="trans" and c.kind in("valu","mfma","vm_store","ds_write") and pv & cu: req=max(req,1)
                    if ps:
                        if c.kind in("valu","trans") and (ps & cu): req=max(req,2)
                        if c.attrs.get("readlane") and (ps & cu): req=max(req,4)
                        if c.kind.startswith("vm_") and (ps & cu): req=max(req,5)
                        if c.kind=="salu" and (ps & cu): req=max(req,1)
                        if c.kind=="branch" and (("vcc",0) in ps) : req=max(req,1)
                        if ("exec",0) in ps and c.kind=="mfma": req=max(req,4)
                elif p.kind=="mfma":
                    D=p.defs; big={2:5,4:8,8:12,16:20}[p.passes]
                    if c.kind in("valu","trans") and (D & (cu|cd)): req=max(req,big)
                    if c.kind in("vm_store","ds_write","vm_load","ds_read","vm_dma") and (D & (cu|cd)): req=max(req,big)
                    if c.kind=="mfma":
                        if D & (c.attrs["A"]|c.attrs["B"]): req=max(req,big)
                        if D & c.attrs["C"]:
                            same = (c.attrs["Clist"]==p.attrs["Dlist"] and c.passes==p.passes)
                            if not same: req=max(req,{2:4,4:6,8:10,16:18}[p.passes])
                            elif p.passes==2: req=max(req,2)
                        elif D & c.defs:
                            req=max(req,big)
                    C=p.attrs["C"]
                    if c.kind in("valu","trans") and (C & cd) and not (D & cd): req=max(req,{2:1,4:3,8:7,16:15}[p.passes])
                elif p.kind=="salu":
                    if ("m0",0) in p.defs and c.kind=="vm_dma": req=max(req,1)
                elif p.kind=="vm_store" and p.wide_store:
                    dat=p.attrs["data"]
                    if c.kind in("valu","trans","mfma") and (dat & cd): req=max(req,2)
                    elif (dat & cd): req=max(req,1)
                if req-dist>need: need=req-dist
            return need
        def drain_hazards():
            need=0
            for (p,dist) in hist:
                req=0
                if p.kind=="mfma": req={2:5,4:8,8:12,16:20}[p.passes]
                elif p.kind in("valu","trans"):
                    req=2
                    if any(not isv(r) for r in p.defs): req=5
                elif p.kind=="vm_store" and p.wide_store: req=2
                elif p.kind=="salu" and ("m0",0) in p.defs: req=1
                if req-dist>need: need=req-dist
            return need
        def add_nops(n):
            while n>0:
                k=min(n,16); i=Ins("s_nop %d"%(k-1)); emit(i); stats["nop"]+=k; n-=k
        def wait_lg(n):
            del lg[:len(lg)-n]
            i=Ins("s_waitcnt lgkmcnt(%d)"%min(n,15)); i.kind="wait"; emit(i); stats["lgkm"]+=1
        def prune(m):
            for q in vms:
                if len(q)>m: del q[:len(q)-m]
        def wait_vmn(n):
            m=min(n,63)
            prune(m)
            i=Ins("s_waitcnt vmcnt(%d)"%m); i.kind="wait"; emit(i); stats["vm"]+=1
        def find_vm(pred):
            best=None
            for q in vms:
                for j in range(len(q)-1,-1,-1):
                    if pred(q[j]):
                        n=len(q)-1-j
                        best=n if best is None else min(best,n)
                        break
            return best
        for c in self.ins:
            k=c.kind
            if k=="save": saved[c.attrs["name"]]=(list(lg),[list(q) for q in vms]); emit(c); continue
            if k=="restore":
                lg[:]=list(saved[c.attrs["name"]][0]); vms[:]=[list(q) for q in saved[c.attrs["name"]][1]]; hist.clear(); emit(c); continue
            if k=="merge":
                l2,v2=saved[c.attrs["name"]]
                assert len(lg)==len(l2) and all(x is y for x,y in zip(lg,l2)), "merge with different outstanding LDS ops: %s %s"%([x.text for x in lg],[x.text for x in l2])
                vms.extend([list(q) for q in v2])
                emit(c); continue
            if k=="wait_vm_tag":
                n=find_vm(lambda x: x.tag==c.attrs["wtag"])
                if n is not None: wait_vmn(n)
                continue
            if k=="wait_lgkm0":
                if lg: wait_lg(0)
                continue
            if k=="wait_vm0":
                prune(0); i=Ins("s_waitcnt vmcnt(0)"); i.kind="wait"; emit(i); continue
            if k=="fence":
                add_nops(drain_hazards()); emit(c); continue
            if k in("comment","dir","raw"): emit(c); continue
            if k=="wait":
                m=re.search(r'lgkmcnt\((\d+)\)',c.text)
                if m:
                    n=int(m.group(1));
                    if len(lg)>n: del lg[:len(lg)-n]
                m=re.search(r'vmcnt\((\d+)\)',c.text)
                if m:
                    prune(int(m.group(1)))
                emit(c); continue
            if k in("label","branch"):
                add_nops(drain_hazards()); emit(c);
                if k=="label": hist.clear()
                continue
            touched=c.uses|c.defs
            idx=None
            for j in range(len(lg)-1,-1,-1):
                if lg[j].kind=="ds_read" and (lg[j].defs & touched): idx=j;break
                if lg[j].kind=="ds_write" and (lg[j].uses & c.defs) and k not in("salu",):
                    pass
            if idx is not None: wait_lg(len(lg)-1-idx)
            n=find_vm(lambda x: x.kind=="vm_load" and (x.defs & touched))
            if n is not None: wait_vmn(n)
            add_nops(need_nops(c))
            emit(c)
            if k in("ds_read","ds_write"): lg.append(c)
            if k=="smem": pass
            if k.startswith("vm_"):
                for q in vms: q.append(c)
        self.stats=stats
        return "\n".join(("  "+i.text if i.kind not in("label",) else i.text) for i in out if i.kind not in ("fence","save","restore","merge"))+"\n"
```

```python
import sys, math, struct
from ir import Prog, Ins
KNAME="recurrent_scan__sliding_block__mixer_channel_mlp__prompt_kernel"
def f32(x): return struct.unpack("<I", struct.pack("<f", x))[0]
def hx(x): return "0x%08x" % (x & 0xffffffff)
WS_QKV=0
WS_H=96*64*1024
WS_O=WS_H+64*112*1024
WS_FL=WS_O+64*32*1024
FL1=0; FL2=12288; FL3=20480; FL_BYTES=32768
WS_ST=WS_FL+FL_BYTES
ST_BYTES=16384
WS_DBG=WS_ST+ST_BYTES
WS_SIZE=WS_DBG+(1<<20)
R=[16384*i for i in range(10)]
LDS_WQ=0
LDS_SCR=16384
LDS_STAT=LDS_SCR
LDS_CS=LDS_SCR+4096
LDS_W2=98304
LDS_K=R[7]; LDS_V=R[8]; VSTRIDE=1088; LDS_Q=LDS_V+16*VSTRIDE
HSLOT=[R[0],R[1],R[6],R[7]]
WSLOT=[R[2],R[3],R[4],R[5],R[8]]
LDS_XG=R[9]; LDS_XS=R[6]; LDS_PT=R[8]; PTP=144
LDS_TOTAL=163840
SPIN_MAX=200000
S_X=4; S_U0=8; S_U1=12; S_W1=16; S_WS=20; S_W2=24; S_WO=28; S_OUT=32
S_B1=36; S_B2=38; S_DBG=40
sW=42; sMW=43; sNW=44; sTB=45; sG=46; sJ=47
sU0=48; sU1=49; sU2=50; sUQ=51
sT0=52; sT1=53; sT2=54; sT3=55; sT4=56; sT5=57; sT6=58; sT7=59
gWB=60; gWOB=61; gHB=62; gOB=63; gW2K=64; gFL=65
sMASKHI=74; sGB=75; sLO32=76
sXOFF=78; sW0OFF=79; sW1OFF=80; sPITCH1=81; sW2OFF=82; sWQOFF=83
sST0=84; sST1=85; sST2=86; sST3=87
sXCD=88; sSLOT=89; sQSC0=90; sQSC1=91
sHD=92; sQB=93; sT2B=94; sC2=95; sISH=96
sA=97; sB=98; sC=99; sD=100; sE=101
def srd(b): return "s[%d:%d]"%(b,b+3)
def vr(b,n=None):
    if n is None or n==1: return "v%d"%b
    return "v[%d:%d]"%(b,b+n-1)
vSTAMP=0
class Cfg:
    stop_after=None
    stamps=False
    touch=True
    force_fallback=False
    dbgtime=False
STAMPS={}
def stamp(P,cfg,name):
    if not cfg.stamps: return
    only=getattr(cfg,'only',None)
    if only and name.replace(" ","_") not in only.split(","): return
    if name not in STAMPS: STAMPS[name]=len(STAMPS)
    idx=STAMPS[name]; assert idx<31
    P.wait_lgkm0()
    P.raw("  s_memrealtime s[66:67]")
    P.raw("  s_memtime s[68:69]")
    P.raw("  s_waitcnt lgkmcnt(0)")
    P.raw("  v_writelane_b32 v%d, s66, %d"%(vSTAMP,idx))
    P.raw("  v_writelane_b32 v%d, s68, %d"%(vSTAMP,idx+32))
def stamp_flush(P,cfg):
    if not cfg.stamps: return
    P("s_lshl_b32 s66, s2, 3"); P("s_add_u32 s66, s66, s%d"%sW); P("s_lshl_b32 s66, s66, 8"); P("s_add_u32 s66, s66, %d"%WS_DBG)
    P("v_lshlrev_b32 v2, 2, v1")
    P("buffer_store_dword v%d, v2, %s, s66 offen"%(vSTAMP,srd(S_WS)))
def setexec(P,nl):
    if nl>=64: P("s_mov_b64 exec, -1")
    elif nl>=32:
        P("s_mov_b32 exec_lo, 0xffffffff"); P("s_mov_b32 exec_hi, %s"%hex((1<<(nl-32))-1))
    else: P("s_mov_b64 exec, %s"%hex((1<<nl)-1))

def setup(P,cfg):
    P("s_cmp_ge_u32 s2, 256")
    P("s_cbranch_scc1 L_end")
    if cfg.stamps or cfg.dbgtime:
        P("s_memrealtime s[92:93]"); P("s_memtime s[94:95]")
    for dst,off in ((S_X,0),(S_U0,8),(S_W1,32),(S_WS,80),(S_DBG,72),(S_B1,40),(S_W2,48),(S_WO,16),(S_OUT,64),(S_B2,56)):
        P("s_load_dwordx2 s[%d:%d], s[0:1], %d"%(dst,dst+1,off))
    P("v_lshrrev_b32 v2, 6, v0")
    P("v_and_b32 v1, 63, v0")
    P("v_readfirstlane_b32 s%d, v2"%sW)
    P("s_lshr_b32 s%d, s2, 5"%sA); P("s_and_b32 s%d, s2, 4"%sB); P("s_lshl1_add_u32 s%d, s%d, s%d"%(sTB,sB,sA))
    P("s_and_b32 s%d, s2, 3"%sG); P("s_bfe_u32 s%d, s2, 0x20003"%sJ)
    for b_,size in ((S_X,2097152),(S_U0,1572864),(S_W1,1835008),(S_WS,WS_SIZE)):
        P("s_mov_b32 s%d, %d"%(b_+2,size)); P("s_mov_b32 s%d, 0x00020000"%(b_+3))
def setup_rest(P,cfg):
    for b_,size in ((S_W2,1835008),(S_WO,524288),(S_OUT,2097152)):
        P("s_mov_b32 s%d, %d"%(b_+2,size)); P("s_mov_b32 s%d, 0x00020000"%(b_+3))
    P("s_and_b32 s%d, s2, 7"%sXCD); P("s_lshr_b32 s%d, s2, 3"%sSLOT)
    P("s_mov_b32 s%d, -1"%sLO32); P("s_mov_b32 s%d, 0"%(sLO32+1))

def check_go(P,vgo,vz):
    Ls=P.newlabel("L_gospin"); Lk=P.newlabel("L_gook")
    P("s_mov_b32 s%d, %d"%(sT7,SPIN_MAX))
    P.label(Ls)
    P("v_readfirstlane_b32 s%d, v%d"%(sT6,vgo)); P("s_cmp_lg_u32 s%d, 0"%sT6); P("s_cbranch_scc1 %s"%Lk)
    P("s_sub_u32 s%d, s%d, 1"%(sT7,sT7)); P("s_cmp_eq_u32 s%d, 0"%sT7); P("s_cbranch_scc1 %s"%Lk)
    P.raw("  global_load_dword v%d, v%d, s[%d:%d] sc1"%(vgo,vz,S_DBG,S_DBG+1)); P.raw("  s_waitcnt vmcnt(0)")
    P("s_branch %s"%Ls)
    P.label(Lk)
def flag_store(P,vaddr,vone,soff,nl=1):
    setexec(P,nl)
    P("buffer_store_dword v%d, v%d, %s, s%d offen sc1"%(vone,vaddr,srd(S_WS),soff))
    P("s_mov_b64 exec, -1")
def poll(P, areg, dreg, nl, soff):
    Ls=P.newlabel("L_spin"); Lk=P.newlabel("L_ok")
    P("s_mov_b32 s%d, %d"%(sT7,SPIN_MAX))
    P.label(Ls)
    setexec(P,nl)
    P("v_cmp_ne_u32 vcc, 1, v%d"%dreg)
    P("s_mov_b64 exec, -1")
    P("s_cbranch_vccz %s"%Lk)
    P("s_sub_u32 s%d, s%d, 1"%(sT7,sT7)); P("s_cmp_eq_u32 s%d, 0"%sT7); P("s_cbranch_scc1 %s"%Lk)
    setexec(P,nl)
    P.raw("  buffer_load_dword v%d, v%d, %s, s%d offen sc1"%(dreg,areg,srd(S_WS),soff))
    P("s_mov_b64 exec, -1")
    P.raw("  s_waitcnt vmcnt(0)")
    P("s_branch %s"%Ls)
    P.label(Lk)
def poll_issue(P, areg, dreg, nl, soff, tag):
    setexec(P,nl)
    P("buffer_load_dword v%d, v%d, %s, s%d offen sc1"%(dreg,areg,srd(S_WS),soff), tag=tag)
    P("s_mov_b64 exec, -1")

from collections import defaultdict
def icost(s):
    if callable(s): return 0
    if isinstance(s,(list,tuple)): return sum(icost(x) for x in s)
    op=s.split()[0]
    if op.startswith("v_mfma"): return 8
    if op in("v_exp_f32","v_rcp_f32","v_rsq_f32"): return 8
    if op.startswith("v_") or op.startswith("ds_") or op.startswith("buffer_") or op.startswith("global_"): return 4
    return 1
def emit(P,L):
    for x in L:
        if callable(x): x(P)
        elif isinstance(x,(list,tuple)): emit(P,x)
        else: P(x)
class Sched:
    def __init__(self): self.m=[]; self.pre=defaultdict(list); self.post=defaultdict(list)
    def main(self,x): self.m.append(x); return len(self.m)-1
    def n(self): return len(self.m)
    def before(self,g,x): self.pre[g].append(x)
    def put(self,g,x): self.post[g].append(x)
    def spread(self,items,g0,g1):
        tot=sum(max(icost(x),1) for x in items); acc=0; n=g1-g0+1
        for x in items:
            c=max(icost(x),1); g=g0+min(n-1,int((acc+c*0.5)*n/tot)); self.post[g].append(x); acc+=c
    def emit(self,P):
        for g,m in enumerate(self.m):
            emit(P,self.pre[g]); emit(P,[m]); emit(P,self.post[g])
        for g in sorted(set(list(self.pre)+list(self.post))):
            if g>=len(self.m): emit(P,self.pre[g]); emit(P,self.post[g])
def T(text,tag): return lambda P: P(text,tag=tag)

vLANE=1; vSEL=2; vXA=6; vWA=10; vX0=14; vX1=15; vWQ=16; vW1=17; vU1=18; vWQT=19
vREC=20
vGA=22; vGB=23
vCS0=24; vCS1=28; vWF=32; vACC0=48; vACC1=64; vACC2=80
vAUGX=96; vAUGW=100; vRS0=104; vRS1=105; vB1a=107; vB1b=108; vB1c=109
vT=110
vRECA=122; vCSW=123; vGO=124; vCSR=125
vZ=126; vL16=127
vXF=128
vROW=252
def X(k): return vr(vXF+4*k,4)
WBUF=[32,40,80,88]
SEG=[0,0,65536,65536,131072,0,0,65536]
IMM=[0,32768,0,32768,0,0,32768,0]
SLOT=[0,32768,65536,98304,131072,0,32768,65536]
sP64=sPITCH1
sW1CUR=sW1OFF
GELU_A=-2*0.7978845608028654*1.4426950408889634
GELU_B=GELU_A*0.044715

def dma_stage(st):
    slot=SLOT[st]; L=[]
    L.append(["s_add_u32 m0, s%d, %d"%(sA,slot),"s_add_u32 s%d, s%d, %d"%(sC,sXOFF,st*128),
              "buffer_load_dwordx4 v%d, %s, s%d offen lds"%(vX0,srd(S_X),sC)])
    L.append(["s_add_u32 m0, s%d, %d"%(sA,slot+1024),"s_add_u32 s%d, s%d, %d"%(sC,sXOFF,st*128),
              "buffer_load_dwordx4 v%d, %s, s%d offen lds"%(vX1,srd(S_X),sC)])
    L.append(["s_add_u32 m0, s%d, %d"%(sB,slot+16384),"s_add_u32 s%d, s%d, %d"%(sC,sW0OFF,st*64*3072),
              "buffer_load_dwordx4 v%d, %s, s%d offen lds"%(vWQ,srd(S_U0),sC)])
    L.append(["s_add_u32 m0, s%d, %d"%(sB,slot+24576),
              T("buffer_load_dwordx4 v%d, %s, s%d offen lds"%(vU1,srd(S_U1),sW1CUR),"st%d"%st),
              "s_add_u32 s%d, s%d, s%d"%(sW1CUR,sW1CUR,sP64)])
    return L
def dma_w2(half):
    return [["s_add_u32 m0, s%d, %d"%(sB,LDS_W2+q*8192),"s_add_u32 s%d, s%d, %d"%(sC,sW2OFF,q*64*3584),
             T("buffer_load_dwordx4 v%d, %s, s%d offen lds"%(vW1,srd(S_W1),sC),"w2_%d"%half)] for q in range(4*half,4*half+4)]
def dma_wq():
    return [["s_add_u32 m0, s%d, %d"%(sA,LDS_WQ+p*1024),"s_add_u32 s%d, s%d, %d"%(sC,sWQOFF,p*32*3584),
             T("buffer_load_dwordx4 v%d, %s, s%d offen lds"%(vWQT,srd(S_W1),sC),"wq")] for p in range(2)]

def p1_prologue(P,cfg):
    t=vT
    P("v_lshrrev_b32 v%d, 3, v%d"%(t,vLANE))
    P("v_lshrrev_b32 v%d, 4, v%d"%(t+1,vLANE))
    P("v_and_b32 v%d, 7, v%d"%(t+2,vLANE))
    P("v_xor_b32 v%d, v%d, v%d"%(t+3,t+2,t+1))
    P("v_lshlrev_b32 v%d, 10, v%d"%(t+4,t))
    P("v_lshl_add_u32 v%d, v%d, 4, v%d"%(vX0,t+3,t+4))
    P("s_movk_i32 s%d, 0x2000"%sC)
    P("v_xad_u32 v%d, v%d, 64, s%d"%(vX1,vX0,sC))
    P("v_lshlrev_b32 v%d, 4, v%d"%(vL16,vLANE))
    P("s_lshl_b32 s%d, s%d, 17"%(sXOFF,sTB)); P("s_lshl_b32 s%d, s%d, 14"%(sC,sW)); P("s_add_u32 s%d, s%d, s%d"%(sXOFF,sXOFF,sC))
    P("s_lshl_b32 s%d, s%d, 11"%(sA,sW))
    P("s_lshl_b32 s%d, s%d, 10"%(sB,sW))
    P("s_lshl2_add_u32 s%d, s%d, s%d"%(sD,sG,sJ)); P("s_lshl_b32 s%d, s%d, 3"%(sD,sD)); P("s_add_u32 s%d, s%d, s%d"%(sD,sD,sW))
    P("s_lshl_b32 s%d, s%d, 7"%(sT3,sTB)); P("s_add_u32 s%d, s%d, s%d"%(sT3,sT3,sD))
    P("s_lshl_b32 s%d, s%d, 10"%(sD,sT3))
    P("s_lshl_b32 s%d, s%d, 1"%(sT0,sJ)); P("s_add_u32 s%d, s%d, 2"%(sT1,sJ)); P("s_min_u32 s%d, s%d, s%d"%(sT1,sT0,sT1))
    P("s_mul_i32 s%d, s%d, 6"%(sU0,sG)); P("s_add_u32 s%d, s%d, s%d"%(sU0,sU0,sT1))
    P("s_sub_u32 s%d, s%d, 1"%(sT0,sT0)); P("s_max_i32 s%d, s%d, s%d"%(sT0,sT0,sJ))
    P("s_mul_i32 s%d, s%d, 7"%(sUQ,sG)); P("s_add_u32 s%d, s%d, s%d"%(sU2,sUQ,sT0)); P("s_add_u32 s%d, s%d, 6"%(sUQ,sUQ))
    P("s_add_u32 s%d, s%d, 1"%(sT0,sU0)); P("s_sub_u32 s%d, s%d, 1"%(sT1,sU2))
    P("s_movk_i32 s%d, 3584"%sT2); P("s_movk_i32 s%d, 3072"%sT4)
    P("s_cmp_lt_u32 s%d, 2"%sJ)
    P("s_cselect_b32 s%d, s%d, s%d"%(sU1,sT0,sT1))
    P("s_cselect_b32 s%d, 0, 1"%sISH)
    P("s_cselect_b32 s%d, s%d, s%d"%(sPITCH1,sT4,sT2))
    P("s_cselect_b32 s%d, s%d, s%d"%(S_U1+2,S_U0+2,S_W1+2))
    P("s_mov_b32 s%d, 0x00020000"%(S_U1+3))
    P("v_lshlrev_b32 v%d, 4, v%d"%(t+2,t+2)); P("v_and_b32 v%d, 1, v%d"%(t+1,t+1)); P("v_lshlrev_b32 v%d, 6, v%d"%(t+1,t+1))
    P("v_xor_b32 v%d, v%d, v%d"%(t+2,t+2,t+1))
    P("v_mad_u32_u24 v%d, v%d, s%d, v%d"%(vWQ,t,sT4,t+2))
    P("v_mad_u32_u24 v%d, v%d, s%d, v%d"%(vW1,t,sT2,t+2))
    P("v_mad_u32_u24 v%d, v%d, s%d, v%d"%(vU1,t,sPITCH1,t+2))
    P("s_lshl_b32 s%d, s%d, 7"%(sW0OFF,sU0)); P("s_mul_i32 s%d, s%d, 24576"%(sC,sW)); P("s_add_u32 s%d, s%d, s%d"%(sW0OFF,sW0OFF,sC))
    P("s_lshl_b32 s%d, s%d, 3"%(sC,sW)); P("s_mul_i32 s%d, s%d, s%d"%(sC,sC,sPITCH1)); P("s_lshl_b32 s%d, s%d, 7"%(sW1OFF,sU1)); P("s_add_u32 s%d, s%d, s%d"%(sW1OFF,sW1OFF,sC))
    P("s_lshl_b32 s%d, s%d, 6"%(sP64,sPITCH1))
    P("s_waitcnt lgkmcnt(0)")
    if cfg.stamps:
        P.raw("  v_mov_b32 v0, 0"); P.raw("  v_writelane_b32 v0, s92, 31"); P.raw("  v_writelane_b32 v0, s94, 63")
    if cfg.dbgtime:
        P("s_mov_b32 s70, s92"); P("s_mov_b32 s72, s94")
    P("s_cmp_lt_u32 s%d, 2"%sJ)
    P("s_cselect_b32 s%d, s%d, s%d"%(S_U1,S_U0,S_W1)); P("s_cselect_b32 s%d, s%d, s%d"%(S_U1+1,S_U0+1,S_W1+1))
    L=P.newlabel("L_noclr")
    P("s_cmp_lg_u32 s2, 0"); P("s_cbranch_scc1 %s"%L)
    for k in range(4): P.raw("  v_mov_b32 v%d, 0"%(t+8+k))
    P.raw("  s_lshl_b32 s%d, s%d, 12"%(sC,sW)); P.raw("  s_add_u32 s%d, s%d, %d"%(sC,sC,WS_FL))
    for i in range(4):
        P.raw("  buffer_store_dwordx4 %s, v%d, %s, s%d offen offset:%d sc1"%(vr(t+8,4),vL16,srd(S_WS),sC,i*1024))
    P.raw("  s_nop 1")
    for k in range(4): P.raw("  v_mov_b32 v%d, -1.0"%(t+4+k))
    P.raw("  s_add_u32 s%d, s%d, %d"%(sC,sA,WS_ST))
    for i in range(2):
        P.raw("  buffer_store_dwordx4 %s, v%d, %s, s%d offen offset:%d sc1"%(vr(t+4,4),vL16,srd(S_WS),sC,i*1024))
    P.raw("  s_nop 1")
    P.label(L)
    P("buffer_load_dwordx4 %s, v%d, %s, s%d offen"%(vr(vROW,4),vL16,srd(S_X),sD), tag="row")
    emit(P,dma_stage(0))
    L=P.newlabel("L_nogo")
    P("s_cmp_lg_u32 s2, 0"); P("s_cbranch_scc1 %s"%L)
    P.raw("  s_waitcnt vmcnt(5)")
    P.raw("  s_barrier")
    P.raw("  s_cmp_lg_u32 s%d, 0"%sW); P.raw("  s_cbranch_scc1 %s"%L)
    P.raw("  v_mov_b32 v%d, 0"%(t+8)); P.raw("  v_mov_b32 v%d, 1"%(t+9))
    P.raw("  s_mov_b64 exec, 1")
    P.raw("  global_store_dword v%d, v%d, s[%d:%d] sc1"%(t+8,t+9,S_DBG,S_DBG+1))
    P.raw("  s_mov_b64 exec, -1")
    P.label(L)
    emit(P,dma_stage(1))
    P("s_and_b32 s%d, s%d, 3"%(sMW,sW)); P("s_lshr_b32 s%d, s%d, 2"%(sNW,sW))
    P("s_xor_b32 s%d, s%d, s%d"%(sC,sMW,sNW))
    P("v_lshrrev_b32 v%d, 5, v%d"%(t+1,vLANE))
    P("v_bfe_u32 v%d, v%d, 1, 3"%(t+2,vLANE))
    P("v_xor_b32 v%d, v%d, v%d"%(t+2,t+2,t+1))
    P("s_lshl_b32 s%d, s%d, 1"%(sD,sC)); P("v_xor_b32 v%d, s%d, v%d"%(t+2,sD,t+2))
    P("v_and_b32 v%d, 31, v%d"%(t,vLANE)); P("v_lshlrev_b32 v%d, 7, v%d"%(t+3,t))
    P("v_lshl_add_u32 v%d, v%d, 4, v%d"%(t+3,t+2,t+3))
    P("s_lshl_b32 s%d, s%d, 12"%(sD,sMW)); P("v_add_u32 v%d, s%d, v%d"%(vXA,sD,t+3))
    for i in range(1,4): P("v_xor_b32 v%d, %d, v%d"%(vXA+i,32*i,vXA))
    P("v_and_b32 v%d, 3, v%d"%(t+2,vLANE)); P("v_lshlrev_b32 v%d, 3, v%d"%(t+2,t+2))
    P("v_bfe_u32 v%d, v%d, 4, 1"%(t+3,vLANE)); P("v_lshl_or_b32 v%d, v%d, 5, v%d"%(t+2,t+3,t+2))
    P("v_bfe_u32 v%d, v%d, 3, 1"%(t+3,vLANE)); P("v_xor_b32 v%d, s%d, v%d"%(t+3,sNW,t+3)); P("v_lshl_or_b32 v%d, v%d, 6, v%d"%(t+2,t+3,t+2))
    P("v_bfe_u32 v%d, v%d, 2, 2"%(t+3,vLANE)); P("v_lshl_or_b32 v%d, v%d, 7, v%d"%(t+2,t+3,t+2))
    P("v_lshl_or_b32 v%d, v%d, 10, v%d"%(t+2,t+1,t+2))
    P("s_lshl_b32 s%d, s%d, 11"%(sD,sC)); P("v_or_b32 v%d, s%d, v%d"%(vWA,sD,t+2))
    for i in range(1,4): P("v_xor_b32 v%d, %s, v%d"%(vWA+i,hx(2048*i),vWA))
    m=0
    for b in (0,32,8,40,20,52,28,60): m|=1<<b
    P("s_mov_b32 s52, %s"%hx(m&0xffffffff)); P("s_mov_b32 s53, %s"%hx(m>>32))
    P("v_mov_b32 v%d, 0x3f803f80"%(t+4))
    for r in range(4): P("v_cndmask_b32 v%d, 0, v%d, s[52:53]"%(vSEL+r,t+4))
    s_=248; q_=249
    P("v_dot2_f32_bf16 v%d, v%d, v%d, 0"%(s_,vROW,t+4)); P("v_dot2_f32_bf16 v%d, v%d, v%d, 0"%(q_,vROW,vROW))
    for k in range(1,4):
        P("v_dot2_f32_bf16 v%d, v%d, v%d, v%d"%(s_,vROW+k,t+4,s_)); P("v_dot2_f32_bf16 v%d, v%d, v%d, v%d"%(q_,vROW+k,vROW+k,q_))
    P("v_mov_b32 v%d, 0"%vZ)
    P("global_load_dword v%d, v%d, s[%d:%d] sc1"%(vGO,vZ,S_DBG,S_DBG+1), tag="go")
    for sh in ("row_shr:1","row_shr:2","row_shr:4","row_shr:8"):
        for r in (s_,q_): P("v_add_f32_dpp v%d, v%d, v%d %s row_mask:0xf bank_mask:0xf bound_ctrl:0"%(r,r,r,sh))
    for r in (s_,q_): P("v_add_f32_dpp v%d, v%d, v%d row_bcast:15 row_mask:0xa bank_mask:0xf"%(r,r,r))
    for r in (s_,q_): P("v_add_f32_dpp v%d, v%d, v%d row_bcast:31 row_mask:0xc bank_mask:0xf"%(r,r,r))
    P("v_mul_f32 v250, %s, v%d"%(hx(f32(1/512.)),s_))
    P("v_mul_f32 v%d, %s, v%d"%(q_,hx(f32(1/512.)),q_))
    P("v_fma_f32 v%d, -v250, v250, v%d"%(q_,q_))
    P("v_max_f32 v251, 0, v%d"%q_)
    emit(P,dma_stage(2))

def p1_late_setup(cfg):
    t=vT; L=[]
    L+=["s_mov_b32 s%d, 0xffff0000"%sMASKHI,
        "s_lshl_b32 s%d, s%d, 7"%(sW2OFF,sU2),"s_mul_i32 s%d, s%d, 28672"%(sD,sW),"s_add_u32 s%d, s%d, s%d"%(sW2OFF,sW2OFF,sD),
        "s_lshl_b32 s%d, s%d, 7"%(sWQOFF,sUQ),"s_lshl_b32 s%d, s%d, 5"%(sD,sJ),"s_add_u32 s%d, s%d, s%d"%(sWQOFF,sWQOFF,sD),
        "s_mul_i32 s%d, s%d, %d"%(sD,sW,64*3584),"s_add_u32 s%d, s%d, s%d"%(sWQOFF,sWQOFF,sD),
        "v_lshrrev_b32 v%d, 1, v%d"%(t+4,vLANE),"v_and_b32 v%d, 1, v%d"%(t+5,vLANE),"v_lshlrev_b32 v%d, 4, v%d"%(t+5,t+5),
        "s_movk_i32 s%d, 3584"%sD,"v_mad_u32_u24 v%d, v%d, s%d, v%d"%(vWQT,t+4,sD,t+5)]
    L+=["v_and_b32 v%d, 31, v%d"%(t+4,vLANE),"s_lshl_b32 s%d, s%d, 5"%(sD,sNW),"v_add_lshl_u32 v%d, s%d, v%d, 1"%(t+5,sD,t+4),
        "s_mul_i32 s%d, s%d, s%d"%(sD,sU1,sISH),"s_lshl_b32 s%d, s%d, 7"%(sD,sD),"v_add_u32 v%d, s%d, v%d"%(t+6,sD,t+5),
        "global_load_ushort v%d, v%d, s[%d:%d]"%(vB1a,t+6,S_B1,S_B1+1),
        "s_lshl_b32 s%d, s%d, 7"%(sD,sU2),"v_add_u32 v%d, s%d, v%d"%(t+7,sD,t+5),
        "global_load_ushort v%d, v%d, s[%d:%d]"%(vB1b,t+7,S_B1,S_B1+1),
        "s_lshl2_add_u32 s%d, s%d, s%d"%(sD,sUQ,sJ),"s_lshl_b32 s%d, s%d, 5"%(sD,sD),"v_and_b32 v%d, 15, v%d"%(t+6,vLANE),"v_lshlrev_b32 v%d, 1, v%d"%(t+6,t+6),
        "v_add_u32 v%d, s%d, v%d"%(t+6,sD,t+6),
        "global_load_ushort v%d, v%d, s[%d:%d]"%(vB1c,t+6,S_B1,S_B1+1)]
    L+=["s_lshl_b32 s%d, s%d, 9"%(sD,sNW),"s_add_u32 s%d, s%d, %d"%(sD,sD,LDS_CS),"v_lshlrev_b32 v%d, 4, v%d"%(t+5,t+4),"v_add_u32 v%d, s%d, v%d"%(vCSR,sD,t+5),
        "s_lshl_b32 s%d, s%d, 2"%(sD,sMW),"v_add_u32 v%d, s%d, v%d"%(vCSW,sD,vCSR),
        "v_lshlrev_b32 v%d, 3, v%d"%(vRECA,t+4)]
    L+=["s_lshl2_add_u32 s%d, s%d, s%d"%(sT4,sTB,sMW),
        "s_lshl_b32 s%d, s%d, 8"%(sT5,sT4),"s_add_u32 s%d, s%d, %d"%(sT5,sT5,WS_ST),
        "s_lshl_b32 s%d, s%d, 1"%(sD,sNW),
        "s_lshl2_add_u32 s%d, s%d, s%d"%(sST0,sU0,sD),"s_lshl_b32 s%d, s%d, 6"%(sST0,sST0),"s_add_u32 s%d, s%d, s%d"%(sST0,sST0,sT4),"s_lshl_b32 s%d, s%d, 10"%(sST0,sST0),
        "s_add_u32 s%d, s%d, 65536"%(sT0,sST0),"s_add_u32 s%d, s%d, %d"%(sT2,sST0,4*65536),"s_add_u32 s%d, s%d, %d"%(sT1,sST0,5*65536),
        "s_mul_i32 s%d, s%d, 112"%(sT6,sT4),"s_add_u32 s%d, s%d, s%d"%(sT7,sT6,sD),
        "s_lshl2_add_u32 s%d, s%d, s%d"%(sST2,sU2,sT7),"s_lshl_b32 s%d, s%d, 10"%(sST2,sST2),"s_add_u32 s%d, s%d, %d"%(sST2,sST2,WS_H),
        "s_sub_u32 s%d, s%d, 4096"%(sST1,sST2),
        ["s_cmp_eq_u32 s%d, 1"%sISH,"s_cselect_b32 s%d, s%d, s%d"%(sST1,sST1,sT2)],
        "s_add_u32 s%d, s%d, s%d"%(sT6,sT6,sJ),"s_lshl2_add_u32 s%d, s%d, s%d"%(sST3,sUQ,sT6),"s_lshl_b32 s%d, s%d, 10"%(sST3,sST3),"s_add_u32 s%d, s%d, %d"%(sST3,sST3,WS_H),
        "s_mov_b32 s%d, 0x05040100"%sE,
        "s_mov_b32 s%d, %s"%(sQSC0,hx(f32(0.25*1.4426950408889634))),
        ["s_cmp_lt_u32 s%d, 7"%sU0,"s_cselect_b32 s%d, s%d, 1.0"%(sQSC1,sQSC0)],
        ["s_cmp_lt_u32 s%d, 8"%sU0,"s_cselect_b32 s%d, s%d, 1.0"%(sQSC0,sQSC0)]]
    return L
def touch_items():
    t=vT
    def f(P):
        Lt=P.newlabel("L_notouch")
        P("s_cmp_lg_u32 s%d, 7"%sW); P("s_cbranch_scc1 %s"%Lt)
        P.raw("  s_mul_i32 s%d, s2, 7168"%sD); P.raw("  v_lshlrev_b32 v%d, 7, v%d"%(t+8,vLANE)); P.raw("  v_min_u32 v%d, 7040, v%d"%(t+9,t+8))
        P.raw("  buffer_load_dword v%d, v%d, %s, s%d offen"%(t+10,t+9,srd(S_W2),sD))
        P.raw("  s_lshl_b32 s%d, s2, 11"%sD); P.raw("  v_and_b32 v%d, 0x780, v%d"%(t+8,t+8))
        P.raw("  buffer_load_dword v%d, v%d, %s, s%d offen"%(t+11,t+8,srd(S_WO),sD))
        P.label(Lt)
    return f
def rec_publish(P):
    P.wait_vm("go"); check_go(P,vGO,vZ)
    P("s_lshl_b32 s%d, s%d, 3"%(sD,sT3)); P("s_add_u32 s%d, s%d, %d"%(sD,sD,WS_ST))
    P("s_mov_b32 exec_lo, 0"); P("s_mov_b32 exec_hi, 0x80000000")
    P("buffer_store_dwordx2 v[250:251], v%d, %s, s%d offen sc1"%(vZ,srd(S_WS),sD))
    P("s_mov_b64 exec, -1")
def rec_issue(P,dst,areg,soff,tag):
    P("buffer_load_dwordx2 %s, v%d, %s, s%d offen sc1"%(vr(dst,2),areg,srd(S_WS),soff),tag=tag)
def rec_poll(P,dst,areg,soff,tag):
    P.wait_vm(tag)
    Ls=P.newlabel("L_rspin"); Lk=P.newlabel("L_rok")
    P("s_mov_b32 s%d, %d"%(sT7,SPIN_MAX))
    P.label(Ls)
    P("v_cmp_eq_u32 vcc, 0xbf800000, v%d"%(dst+1))
    P("s_cbranch_vccz %s"%Lk)
    P("s_sub_u32 s%d, s%d, 1"%(sT7,sT7)); P("s_cmp_eq_u32 s%d, 0"%sT7); P("s_cbranch_scc1 %s"%Lk)
    P.raw("  buffer_load_dwordx2 %s, v%d, %s, s%d offen sc1"%(vr(dst,2),areg,srd(S_WS),soff))
    P.raw("  s_waitcnt vmcnt(0)")
    P("s_branch %s"%Ls)
    P.label(Lk)

def rd_stage(st,i):
    b=WBUF[(4*st+i)&3]; imm=IMM[st]
    pre=[]
    if st>0 and SEG[st]!=SEG[st-1]:
        d=SEG[st]-SEG[st-1]
        pre=["v_add_u32 v%d, %s, v%d"%(vXA+i,hx(d),vXA+i),"v_add_u32 v%d, %s, v%d"%(vWA+i,hx(d),vWA+i)]
    a=pre+["ds_read_b128 %s, v%d offset:%d"%(X(4*st+i),vXA+i,imm),
           "ds_read_b64_tr_b16 %s, v%d offset:%d"%(vr(b,2),vWA+i,imm+16384),
           "ds_read_b64_tr_b16 %s, v%d offset:%d"%(vr(b+2,2),vWA+i,imm+16384+512)]
    c=["ds_read_b64_tr_b16 %s, v%d offset:%d"%(vr(b+4,2),vWA+i,imm+24576),
       "ds_read_b64_tr_b16 %s, v%d offset:%d"%(vr(b+6,2),vWA+i,imm+24576+512)]
    return a,c

def rr_of(P_list,rec,t,rr):
    return ["v_add_f32 v%d, %s, v%d"%(t,hx(f32(1e-5)),rec+1),
            "v_rsq_f32 v%d, v%d"%(t,t),
            "v_mul_f32 v%d, v%d, v%d"%(rr,rec+1,t),
            "v_mul_f32 v%d, v%d, v%d"%(rr,rr,t),
            "v_add_f32 v%d, %s, v%d"%(rr,hx(f32(1e-5)),rr),
            "v_rsq_f32 v%d, v%d"%(rr,rr),
            "v_mul_f32 v%d, v%d, v%d"%(rr,rr,t)]
def stats_finalize():
    t=vT
    L=rr_of(None,vREC,t+2,t+3)
    L+=["v_sub_f32 v%d, 0, v%d"%(t,vREC),
        "v_mul_f32 v%d, s%d, v%d"%(vRS0,sQSC0,t+2),
        "v_mul_f32 v%d, s%d, v%d"%(vRS1,sQSC1,t+2),
        "v_rcp_f32 v%d, v%d"%(t+4,t+3),
        "v_mul_f32 v%d, %s, v%d"%(vGA,hx(f32(GELU_A)),t+3),
        "v_mul_f32 v%d, v%d, v%d"%(t+1,t+3,t+3),
        "v_mul_f32 v%d, v%d, v%d"%(t+1,t+1,t+3),
        "v_mul_f32 v%d, %s, v%d"%(vGB,hx(f32(GELU_B)),t+1),
        "v_cvt_pk_bf16_f32 v%d, v%d, v%d"%(t+5,t,t),
        "v_cvt_pk_bf16_f32 v%d, v%d, v%d"%(t+6,t+4,t+4),
        "v_and_b32 v%d, s%d, v%d"%(t+7,sMASKHI,t+5),
        "v_and_b32 v%d, s%d, v%d"%(t+6,sMASKHI,t+6),
        "v_sub_f32 v%d, v%d, v%d"%(t+7,t,t+7),
        "v_sub_f32 v%d, v%d, v%d"%(t+6,t+4,t+6),
        "v_cvt_pk_bf16_f32 v%d, v%d, v%d"%(t+7,t+7,t+4),
        "v_cvt_pk_bf16_f32 v%d, v%d, 0"%(t+6,t+6),
        "v_cndmask_b32 v%d, 0, v%d, s[%d:%d]"%(vAUGX,t+5,sLO32,sLO32+1),
        "v_cndmask_b32 v%d, 0, v%d, s[%d:%d]"%(vAUGX+1,t+7,sLO32,sLO32+1),
        "v_cndmask_b32 v%d, 0, v%d, s[%d:%d]"%(vAUGX+2,t+6,sLO32,sLO32+1),
        "v_mov_b32 v%d, 0"%(vAUGX+3),
        "v_mov_b32 v%d, 0"%(vAUGW+3)]
    return L
def augw(breg, acc, blk, with_mfma=True):
    c=vT+8
    L=["ds_read_b128 %s, v%d offset:%d"%(vr(c,4),vCSR,blk*1024),
       "v_add_f32 v%d, v%d, v%d"%(c,c,c+1),"v_add_f32 v%d, v%d, v%d"%(c+2,c+2,c+3),"v_add_f32 v%d, v%d, v%d"%(c,c,c+2),
       "v_cvt_pk_bf16_f32 v%d, v%d, v%d"%(c+1,c,c),
       "v_and_b32 v%d, s%d, v%d"%(c+2,sMASKHI,c+1),
       "v_sub_f32 v%d, v%d, v%d"%(c+2,c,c+2),
       "v_cvt_pk_bf16_f32 v%d, v%d, v%d"%(vAUGW,c,c+2)]
    if breg is None:
        L+=["v_and_b32 v%d, 0xffff, v%d"%(vAUGW+1,c+1),"v_mov_b32 v%d, 0"%(vAUGW+2)]
    else:
        L+=["v_perm_b32 v%d, v%d, v%d, s%d"%(vAUGW+1,breg,c+1,sE),"v_mov_b32 v%d, v%d"%(vAUGW+2,breg)]
    if with_mfma: L+=[aug_mfma(acc)]
    return L
def aug_mfma(acc): return "v_mfma_f32_32x32x16_bf16 %s, %s, %s, %s"%(vr(acc,16),vr(vAUGW,4),vr(vAUGX,4),vr(acc,16))
def epi_qkv(acc, rs, soff0, soff1, tag):
    L=[]
    for v in range(8): L.append("v_mul_f32 v%d, v%d, v%d"%(acc+v,rs,acc+v))
    for k in range(4): L.append("v_cvt_pk_bf16_f32 v%d, v%d, v%d"%(acc+k,acc+2*k,acc+2*k+1))
    L.append("buffer_store_dwordx4 %s, v%d, %s, s%d offen sc1"%(vr(acc,4),vL16,srd(S_WS),soff0))
    for v in range(8,16): L.append("v_mul_f32 v%d, v%d, v%d"%(acc+v,rs,acc+v))
    for k in range(4,8): L.append("v_cvt_pk_bf16_f32 v%d, v%d, v%d"%(acc+k,acc+2*k,acc+2*k+1))
    L.append(T("buffer_store_dwordx4 %s, v%d, %s, s%d offen sc1"%(vr(acc+4,4),vL16,srd(S_WS),soff1),tag))
    return L
def epi_gelu(acc, nreg, soff, tag, t=None):
    L=[]; t=vT if t is None else t
    for g0 in range(0,nreg,4):
        R=range(g0,g0+4)
        for v in R: L.append("v_mul_f32 v%d, v%d, v%d"%(t+(v&3),acc+v,acc+v))
        for v in R: L.append("v_fma_f32 v%d, v%d, v%d, v%d"%(t+(v&3),t+(v&3),vGB,vGA))
        for v in R: L.append("v_mul_f32 v%d, v%d, v%d"%(t+(v&3),t+(v&3),acc+v))
        for v in R: L.append("v_exp_f32 v%d, v%d"%(t+(v&3),t+(v&3)))
        for v in R: L.append("v_add_f32 v%d, 1.0, v%d"%(t+(v&3),t+(v&3)))
        for v in R: L.append("v_rcp_f32 v%d, v%d"%(t+(v&3),t+(v&3)))
        for v in R: L.append("v_mul_f32 v%d, v%d, v%d"%(acc+v,acc+v,t+(v&3)))
        for k in (g0//2,g0//2+1): L.append("v_cvt_pk_bf16_f32 v%d, v%d, v%d"%(acc+k,acc+2*k,acc+2*k+1))
        if g0==4:
            L.append(T("buffer_store_dwordx4 %s, v%d, %s, s%d offen sc1"%(vr(acc,4),vL16,srd(S_WS),soff),tag))
        if g0==12:
            L.append(T("buffer_store_dwordx4 %s, v%d, %s, s%d offen offset:1024 sc1"%(vr(acc+4,4),vL16,srd(S_WS),soff),tag))
    return L

PB_ORDER=list(range(16))+[16,20,24,28]+[17,18,19,21,22,23,25,26,27,29,30,31]
def pb_reads(p):
    ks=PB_ORDER[p]; q=ks>>2; i=ks&3; b=vWF+4*(p&3)
    return ["ds_read_b64_tr_b16 %s, v%d offset:%d"%(vr(b,2),vWA+i,q*8192),
            "ds_read_b64_tr_b16 %s, v%d offset:%d"%(vr(b+2,2),vWA+i,q*8192+512)]
def pc_reads(ks,areg,b):
    q=ks>>2; i=ks&3
    return ["ds_read_b64_tr_b16 %s, v%d offset:%d"%(vr(b,2),areg+i,q*2048),
            "ds_read_b64_tr_b16 %s, v%d offset:%d"%(vr(b+2,2),areg+i,q*2048+128)]

def p1(P,cfg):
    t=vT
    p1_prologue(P,cfg)
    stamp(P,cfg,"setup")
    P.wait_vm("st0")
    P("s_barrier")
    stamp(P,cfg,"st0 landed")
    for i in (0,1):
        a,c=rd_stage(0,i); emit(P,a+c)
    S=Sched()
    late=p1_late_setup(cfg)
    for st in range(8):
        base=S.n()
        for i in range(4):
            b=WBUF[(4*st+i)&3]; first=(st==0 and i==0)
            S.main("v_mfma_f32_32x32x16_bf16 %s, %s, %s, %s"%(vr(vACC0,16),vr(b,4),X(4*st+i),"0" if first else vr(vACC0,16)))
            S.main("v_mfma_f32_32x32x16_bf16 %s, %s, %s, %s"%(vr(vACC1,16),vr(b+4,4),X(4*st+i),"0" if first else vr(vACC1,16)))
            if i==0:
                S.main("v_mfma_f32_16x16x32_bf16 %s, %s, %s, %s"%(vr(vCS0,4),vr(vSEL,4),vr(b,4),"0" if st==0 else vr(vCS0,4)))
                S.main("v_mfma_f32_16x16x32_bf16 %s, %s, %s, %s"%(vr(vCS1,4),vr(vSEL,4),vr(b+4,4),"0" if st==0 else vr(vCS1,4)))
        nods=getattr(cfg,'nods',False)
        if not nods:
            a,c=rd_stage(st,2); S.put(base+0,a); S.put(base+1,c)
            a,c=rd_stage(st,3); S.put(base+3,a); S.put(base+4,c)
        bw=[lambda P,st=st: P.wait_vm("st%d"%(st+1) if st<7 else "w2_0"),"s_barrier"]
        if getattr(cfg,'nowait',False): bw=bw[1:]
        if getattr(cfg,'nobar',False): bw=bw[:-1]
        if cfg.stamps and st in (0,3,7): bw.append(lambda P,st=st: stamp(P,cfg,"1a bar%d"%st))
        S.before(base+6,bw)
        if st<7:
            if not nods:
                a,c=rd_stage(st+1,0); S.put(base+6,a); S.put(base+7,c)
                a,c=rd_stage(st+1,1); S.put(base+8,a); S.put(base+9,c)
        else:
            d=LDS_W2-SEG[7]
            S.put(base+6,["v_add_u32 v%d, %s, v%d"%(vWA+0,hx(d),vWA+0)]+pb_reads(0))
            S.put(base+8,["v_add_u32 v%d, %s, v%d"%(vWA+1,hx(d),vWA+1)]+pb_reads(1))
            S.put(base+9,["v_add_u32 v%d, %s, v%d"%(vWA+2,hx(d),vWA+2),"v_add_u32 v%d, %s, v%d"%(vWA+3,hx(d),vWA+3)])
        if st<=4: D=dma_stage(st+3)
        elif st==5: D=dma_w2(0)
        elif st==6: D=dma_w2(1)
        else: D=dma_wq()
        if getattr(cfg,'nodma',False) and st<=4: D=[]
        for x,g in zip(D,(1,3,5,8)): S.put(base+g,x)
        if st==0:
            S.put(base+2,lambda P: setup_rest(P,cfg))
            S.spread(late,base+4,base+25)
        if st==2 and not getattr(cfg,'norec',False): S.put(base+7,lambda P: rec_publish(P))
        if st==3 and cfg.touch: S.put(base+7,touch_items())
        if st==5: S.put(base+7,lambda P: rec_issue(P,vREC,vRECA,sT5,"rec"))
        if st==7:
            if not getattr(cfg,'norec',False): S.put(base+2,lambda P: rec_poll(P,vREC,vRECA,sT5,"rec"))
            S.spread(stats_finalize(),base+3,base+9)
    S.emit(P)
    stamp(P,cfg,"1a done")
    P("ds_write_b32 v%d, v%d"%(vCSW,vCS0)); P("ds_write_b32 v%d, v%d offset:1024"%(vCSW,vCS1))
    Lh=P.newlabel("L_passB_h"); Lj=P.newlabel("L_passB_done")
    P("s_cmp_eq_u32 s%d, 1"%sISH)
    P("s_cbranch_scc1 %s"%Lh)
    P.save_state("pb")
    for typ in (0,1):
        if typ==1:
            P.label(Lh); P.restore_state("pb")
        S=Sched(); gp=[]
        for p,ks in enumerate(PB_ORDER):
            b=vWF+4*(p&3)
            g=S.main("v_mfma_f32_32x32x16_bf16 %s, %s, %s, %s"%(vr(vACC2,16),vr(b,4),X(ks),"0" if p==0 else vr(vACC2,16)))
            gp.append(g)
            if (ks&3)==0:
                S.main("v_mfma_f32_16x16x32_bf16 %s, %s, %s, %s"%(vr(vCS0,4),vr(vSEL,4),vr(b,4),"0" if ks==0 else vr(vCS0,4)))
            if p+2<32: S.put(g,pb_reads(p+2))
        S.before(gp[1],[lambda P: P.wait_lgkm0(),"s_barrier"]+([lambda P: stamp(P,cfg,"X1")] if cfg.stamps else []))
        if cfg.stop_after is None:
            S.put(gp[1],lambda P: g2_indices(P))
            W=g2_w_items(0)+g2_w_items(1)+g2_w_items(2)+g2_w_items(3)
            S.spread(W,gp[3],gp[20])
        S.before(gp[13],[lambda P: P.wait_vm("w2_1"), lambda P: P.wait_vm("wq"),"s_barrier"])
        fill=augw(None,vACC0,0)+augw((vB1a if typ else None),vACC1,1)
        fill+=epi_qkv(vACC0,vRS0,sST0,sT0,"qkv")
        if typ==0: fill+=epi_qkv(vACC1,vRS1,sST1,sT1,"qkv")
        else: fill+=epi_gelu(vACC1,16,sST1,"h1")
        S.spread(fill,gp[1],gp[16] if typ==0 else gp[27])
        S.before(gp[21],"ds_write_b32 v%d, v%d offset:2048"%(vCSW,vCS0))
        wa=["s_xor_b32 s%d, s%d, s%d"%(sC,sMW,sNW),"s_lshl_b32 s%d, s%d, 9"%(sC,sC),
            "v_bfe_u32 v%d, v%d, 2, 2"%(vXA,vLANE),"v_lshrrev_b32 v%d, 5, v%d"%(vXA+1,vLANE),
            "v_lshl_or_b32 v%d, v%d, 3, v%d"%(vXA,vXA+1,vXA),"v_lshlrev_b32 v%d, 5, v%d"%(vXA,vXA),
            "v_and_b32 v%d, 3, v%d"%(vXA+1,vLANE),"v_lshl_or_b32 v%d, v%d, 3, v%d"%(vXA,vXA+1,vXA),"v_or_b32 v%d, s%d, v%d"%(vXA,sC,vXA)]
        for i in range(1,4): wa+=["v_xor_b32 v%d, %s, v%d"%(vXA+i,hx(512*i),vXA)]
        assert LDS_WQ==0
        S.put(gp[22],[wa])
        S.before(gp[26],[lambda P: P.wait_lgkm0(), "s_barrier"]+([lambda P: stamp(P,cfg,"X3")] if cfg.stamps else []))
        S.spread(augw(vB1b,vACC2,2,with_mfma=False),gp[28] if typ else gp[26],gp[30])
        S.emit(P)
        P(aug_mfma(vACC2))
        f1_publish(P,typ)
        P.wait_lgkm0()
        if typ==0:
            P("s_branch %s"%Lj)
            P.save_state("pb0")
    P.label(Lj); P.merge_state("pb0")
    stamp(P,cfg,"passB done")
    Ln1=P.newlabel("L_passC_nw1"); Lj=P.newlabel("L_passC_done")
    P("s_cmp_eq_u32 s%d, 1"%sNW); P("s_cbranch_scc1 %s"%Ln1)
    P.save_state("pc")
    S=Sched(); gp=[]
    emit(P,pc_reads(0,vXA,vWF)+pc_reads(1,vXA,vWF+4))
    for ks in range(32):
        b=vWF+4*(ks&3)
        g=S.main("v_mfma_f32_32x32x16_bf16 %s, %s, %s, %s"%(vr(vACC0,16),vr(b,4),X(ks),"0" if ks==0 else vr(vACC0,16))); gp.append(g)
        if ks+2<32: S.put(g,pc_reads(ks+2,vXA,vWF+4*((ks+2)&3)))
    S.before(gp[10],[lambda P: P.wait_lgkm0(),"s_barrier"])
    S.spread(epi_gelu(vACC2,16,sST2,"h2"),gp[0],gp[27])
    S.spread(augw(vB1c,vACC0,3,with_mfma=False),gp[27],gp[30])
    S.emit(P)
    P(aug_mfma(vACC0))
    emit(P,epi_gelu(vACC0,8,sST3,"hq"))
    if cfg.stop_after!='p1': att_pre_nw0(P,cfg)
    P.wait_lgkm0()
    P("s_branch %s"%Lj)
    P.save_state("pc0")
    P.label(Ln1); P.restore_state("pc")
    for q in range(8):
        emit(P,pc_reads(4*q,vXA,vWF+4*(q&3)))
        if q>=1:
            qq=q-1
            P("v_mfma_f32_16x16x32_bf16 %s, %s, %s, %s"%(vr(vCS0,4),vr(vSEL,4),vr(vWF+4*(qq&3),4),"0" if qq==0 else vr(vCS0,4)))
    P("v_mfma_f32_16x16x32_bf16 %s, %s, %s, %s"%(vr(vCS0,4),vr(vSEL,4),vr(vWF+4*(7&3),4),vr(vCS0,4)))
    P("ds_write_b32 v%d, v%d offset:%d"%(vCSW,vCS0,3072-512))
    P.wait_lgkm0()
    P("s_barrier")
    emit(P,epi_gelu(vACC2,16,sST2,"h2"))
    if cfg.stop_after!='p1': att_pre_nw1(P,cfg)
    P.wait_lgkm0()
    P.label(Lj); P.merge_state("pc0")
    stamp(P,cfg,"P1 done")

def f1_publish(P,typ):
    P("s_lshl2_add_u32 s%d, s%d, s%d"%(sC,sTB,sMW)); P("s_lshl_b32 s%d, s%d, 6"%(sD,sNW)); P("s_add_u32 s%d, s%d, s%d"%(sC,sC,sD))
    P("s_lshl_b32 s%d, s%d, 7"%(sD,sU0)); P("s_add_u32 s%d, s%d, s%d"%(sC,sC,sD)); P("s_lshl_b32 s%d, s%d, 2"%(sC,sC)); P("s_add_u32 s%d, s%d, %d"%(sC,sC,WS_FL+FL1))
    P("v_lshlrev_b32 v%d, 9, v%d"%(vX0,vLANE))
    P("v_mov_b32 v%d, 1"%vX1)
    P.wait_vm("qkv")
    flag_store(P,vX0,vX1,sC,nl=(2 if typ==0 else 1))
def f2_publish(P,vz,vone):
    P("s_lshl2_add_u32 s%d, s%d, s%d"%(sC,sTB,sMW)); P("s_lshl_b32 s%d, s%d, 5"%(sC,sC))
    P("s_lshl2_add_u32 s%d, s%d, s%d"%(sD,sG,sJ)); P("s_lshl1_add_u32 s%d, s%d, s%d"%(sD,sD,sNW)); P("s_add_u32 s%d, s%d, s%d"%(sC,sC,sD))
    P("s_lshl_b32 s%d, s%d, 2"%(sC,sC)); P("s_add_u32 s%d, s%d, %d"%(sC,sC,WS_FL+FL2))
    P("v_mov_b32 v%d, 0"%vz); P("v_mov_b32 v%d, 1"%vone)
    for tg in ("h1","h2","hq"): P.wait_vm(tg)
    flag_store(P,vz,vone,sC)

aQ=128; aK=132; aV=140; aS=156; aO=188; aM0=204; aM8=220; aKA=236; aVA=237; aT=242; aL16=252; aPOLL=253; aPA=254; aQA=241
NEG=0xF149F2CA
def att_indices(P):
    P("s_lshl_b32 s%d, s%d, 2"%(sHD,sXCD)); P("s_and_b32 s%d, s%d, 3"%(sC,sSLOT)); P("s_add_u32 s%d, s%d, s%d"%(sHD,sHD,sC))
    P("s_lshr_b32 s%d, s%d, 2"%(sQB,sSLOT))
def att_f1_addr(P):
    t=aT
    P("v_lshrrev_b32 v%d, 4, v%d"%(t,vLANE))
    P("v_and_b32 v%d, 15, v%d"%(t+1,vLANE))
    P("s_lshl_b32 s%d, s%d, 3"%(sC,sQB)); P("s_sub_u32 s%d, s%d, 8"%(sD,sC))
    P("v_add_u32 v%d, s%d, v%d"%(t+2,sD,t+1))
    P("v_max_i32 v%d, 0, v%d"%(t+2,t+2))
    P("v_add_u32 v%d, s%d, v%d"%(t+3,sC,t+1))
    P("v_cmp_eq_u32 vcc, 2, v%d"%t); P("v_cndmask_b32 v%d, v%d, v%d, vcc"%(t+2,t+2,t+3))
    P("v_add_u32 v%d, 1, v%d"%(t+3,t)); P("v_lshlrev_b32 v%d, 3, v%d"%(t+3,t+3)); P("v_cndmask_b32 v%d, v%d, 0, vcc"%(t+3,t+3))
    P("v_add_u32 v%d, s%d, v%d"%(t+3,sXCD,t+3))
    P("s_lshr_b32 s%d, s%d, 1"%(sC,sHD)); P("s_and_b32 s%d, s%d, 1"%(sC,sC)); P("s_lshl_b32 s%d, s%d, 6"%(sC,sC))
    P("v_lshlrev_b32 v%d, 7, v%d"%(t+3,t+3)); P("v_add_u32 v%d, v%d, v%d"%(t+2,t+2,t+3)); P("v_add_u32 v%d, s%d, v%d"%(t+2,sC,t+2))
    P("v_lshlrev_b32 v%d, 2, v%d"%(aPA,t+2))
    P("s_mov_b32 s%d, %d"%(gFL,WS_FL+FL1))
def att_loads(P):
    t=aT
    P("s_cmp_lt_u32 s%d, 2"%sMW); P("s_cselect_b32 s%d, 0x40000000, 0"%sC)
    P("s_cmp_eq_u32 s%d, 0"%sQB); P("s_cselect_b32 s%d, s%d, 0"%(sC,sC))
    P("v_add_u32 v%d, s%d, v%d"%(t,sC,aL16))
    P("s_lshl_b32 s%d, s%d, 3"%(sC,sQB)); P("s_lshl_b32 s%d, s%d, 2"%(sD,sMW)); P("s_add_u32 s%d, s%d, s%d"%(sC,sC,sD)); P("s_sub_u32 s%d, s%d, 8"%(sC,sC))
    P("s_add_u32 s%d, s%d, 32"%(sD,sHD)); P("s_lshl_b32 s%d, s%d, 6"%(sD,sD)); P("s_add_u32 s%d, s%d, s%d"%(sD,sD,sC)); P("s_lshl_b32 s%d, s%d, 10"%(sD,sD))
    P("s_add_u32 s%d, s%d, %d"%(sT0,sD,32*64*1024))
    P("s_lshl_b32 s%d, s%d, 12"%(sT1,sMW))
    P("s_add_u32 m0, s%d, %d"%(sT1,LDS_K))
    for b in range(4):
        P("buffer_load_dwordx4 v%d, %s, s%d offen offset:%d sc1 lds"%(t,srd(S_WS),sD,b*1024))
    P("s_lshl_b32 s%d, s%d, 6"%(sC,sHD)); P("s_lshl_b32 s%d, s%d, 3"%(sD,sQB)); P("s_add_u32 s%d, s%d, s%d"%(sC,sC,sD)); P("s_lshl_b32 s%d, s%d, 1"%(sD,sMW))
    P("s_add_u32 s%d, s%d, s%d"%(sC,sC,sD)); P("s_lshl_b32 s%d, s%d, 10"%(sC,sC))
    P("s_lshl_b32 s%d, s%d, 11"%(sD,sMW)); P("s_add_u32 m0, s%d, %d"%(sD,LDS_Q))
    P("buffer_load_dwordx4 v%d, %s, s%d offen sc1 lds"%(aL16,srd(S_WS),sC))
    P("buffer_load_dwordx4 v%d, %s, s%d offen offset:1024 sc1 lds"%(aL16,srd(S_WS),sC))
    P("s_mul_i32 s%d, s%d, %d"%(sT1,sMW,4*VSTRIDE))
    for b in range(4):
        P("s_add_u32 m0, s%d, %d"%(sT1,LDS_V+b*VSTRIDE)); P("s_add_u32 s%d, s%d, %d"%(sC,sT0,b*1024))
        P("buffer_load_dwordx4 v%d, %s, s%d offen sc1 lds"%(t,srd(S_WS),sC), tag="kvq")
def att_setup(P):
    t=aT
    P("v_lshrrev_b32 v%d, 2, v%d"%(t,vLANE)); P("v_and_b32 v%d, 3, v%d"%(t+1,vLANE))
    P("v_mul_u32_u24 v%d, %d, v%d"%(t+2,VSTRIDE,t)); P("v_lshl_add_u32 v%d, v%d, 3, v%d"%(t+2,t+1,t+2)); P("v_add_u32 v%d, %d, v%d"%(t+2,LDS_V+1024,t+2))
    P("s_cmp_eq_u32 s%d, 0"%sQB); P("s_cselect_b32 s%d, 8, 0"%sC)
    P("v_cmp_le_u32 vcc, s%d, v%d"%(sC,t))
    P("v_mov_b32 v%d, 0x3f80"%(t+4)); P("v_cndmask_b32 v%d, 0, v%d, vcc"%(t+4,t+4))
    P("v_cmp_gt_u32 vcc, 2, v%d"%(t+1)); P("v_cndmask_b32 v%d, 0, v%d, vcc"%(t+4,t+4)); P("v_mov_b32 v%d, 0"%(t+5))
    P("ds_write_b64 v%d, %s"%(t+2,vr(t+4,2)))
    P("s_lshl_b32 s%d, s%d, 10"%(sC,sW)); P("s_add_u32 s%d, s%d, %d"%(sD,sC,LDS_K)); P("v_add_u32 v%d, s%d, v%d"%(aKA,sD,aL16))
    P("s_add_u32 s%d, s%d, %d"%(sD,sC,LDS_Q)); P("v_add_u32 v%d, s%d, v%d"%(aQA,sD,aL16))
    P("v_and_b32 v%d, 15, v%d"%(t,vLANE)); P("v_lshrrev_b32 v%d, 2, v%d"%(t,t))
    P("v_and_b32 v%d, 3, v%d"%(t+1,vLANE))
    P("v_lshrrev_b32 v%d, 5, v%d"%(t+2,vLANE))
    P("v_lshl_add_u32 v%d, v%d, 2, v%d"%(t+3,t+2,t)); P("v_lshlrev_b32 v%d, 4, v%d"%(t+3,t+3))
    P("v_and_b32 v%d, 1, v%d"%(t+4,t+1)); P("v_lshl_add_u32 v%d, v%d, 9, v%d"%(t+3,t+4,t+3))
    P("v_lshrrev_b32 v%d, 1, v%d"%(t+4,t+1)); P("v_lshl_add_u32 v%d, v%d, 3, v%d"%(t+3,t+4,t+3))
    P("v_lshlrev_b32 v%d, 3, v%d"%(t+4,t+1)); P("v_add_u32 v%d, 1024, v%d"%(t+4,t+4))
    P("s_mul_i32 s%d, s%d, %d"%(sC,sW,VSTRIDE)); P("s_add_u32 s%d, s%d, %d"%(sC,sC,LDS_V))
    P("v_lshrrev_b32 v%d, 4, v%d"%(t+5,vLANE)); P("v_and_b32 v%d, 1, v%d"%(t+5,t+5)); P("v_cmp_eq_u32 vcc, 1, v%d"%(t+5))
    for k in range(4):
        P("v_add_u32 v%d, %d, v%d"%(t+6,(k>>1)*256+(k&1)*128,t+3))
        P("v_cndmask_b32 v%d, v%d, v%d, vcc"%(t+6,t+6,t+4))
        P("v_add_u32 v%d, s%d, v%d"%(aVA+k,sC,t+6))
    P("v_and_b32 v%d, 31, v%d"%(t,vLANE)); P("v_lshlrev_b32 v%d, 2, v%d"%(t+2,t+2)); P("v_sub_u32 v%d, v%d, v%d"%(t,t,t+2))
    P("v_mov_b32 v%d, %s"%(t+1,hx(NEG)))
    prs=[52,54,56,58]
    for v0 in range(0,16,4):
        for k in range(4):
            v=v0+k; cv=8*(v//4)+v%4
            P("v_cmp_gt_i32 s[%d:%d], %d, v%d"%(prs[k],prs[k]+1,cv,t))
        for k in range(4):
            v=v0+k
            P("v_cndmask_b32 v%d, v%d, 0, s[%d:%d]"%(aM0+v,t+1,prs[k],prs[k]+1))
            P("v_cndmask_b32 v%d, 0, v%d, s[%d:%d]"%(aM8+v,t+1,prs[k],prs[k]+1))
def att_pre_nw0(P,cfg):
    att_indices(P)
    P("v_lshlrev_b32 v%d, 4, v%d"%(aL16,vLANE))
    att_setup(P)
def att_pre_nw1(P,cfg):
    att_indices(P)
    P("v_lshlrev_b32 v%d, 4, v%d"%(aL16,vLANE))
    att_f1_addr(P)
    poll_issue(P,aPA,aPOLL,40,gFL,"f1")
    att_setup(P)
    P.wait_vm("f1")
    poll(P,aPA,aPOLL,40,gFL)
    stamp(P,cfg,"F1 ok")
    att_loads(P)
    P.wait_vm("kvq")

def att_kread(j): return ["ds_read_b128 %s, v%d offset:%d"%(vr(aK+4*(j&1),4),aKA,j*1024)]
def att_vread(j):
    b=aV+8*(j&1)
    return ["ds_read_b64_tr_b16 %s, v%d offset:%d"%(vr(b+2*k,2),aVA+k,j*VSTRIDE) for k in range(4)]
def att_qk(j):
    C="0"
    if j==0: C=vr(aM0,16)
    if j==8: C=vr(aM8,16)
    return ["v_mfma_f32_32x32x16_bf16 %s, %s, %s, %s"%(vr(aS+16*(j&1),16),vr(aK+4*(j&1),4),vr(aQ,4),C)]
def att_main(P,cfg,hooks={}):
    emit(P,["ds_read_b128 %s, v%d"%(vr(aQ,4),aQA)]+att_kread(0)+att_kread(1)+att_vread(0)+att_qk(0))
    for j in range(9):
        S=aS+16*(j&1); b=aV+8*(j&1)
        if j<8: emit(P,att_qk(j+1))
        if j<7: emit(P,att_kread(j+2))
        if j<8: emit(P,att_vread(j+1))
        for v in range(8): P("v_exp_f32 v%d, v%d"%(S+v,S+v))
        for k in range(4):
            P("v_cvt_pk_bf16_f32 v%d, v%d, v%d"%(S+k,S+2*k,S+2*k+1))
        for v in range(8,12): P("v_exp_f32 v%d, v%d"%(S+v,S+v))
        P("v_mfma_f32_32x32x16_bf16 %s, %s, %s, %s"%(vr(aO,16),vr(b,4),vr(S,4),"0" if j==0 else vr(aO,16)))
        for v in range(12,16): P("v_exp_f32 v%d, v%d"%(S+v,S+v))
        for k in range(4,8): P("v_cvt_pk_bf16_f32 v%d, v%d, v%d"%(S+k,S+2*k,S+2*k+1))
        P("v_mfma_f32_32x32x16_bf16 %s, %s, %s, %s"%(vr(aO,16),vr(b+4,4),vr(S+4,4),vr(aO,16)))
        if j in hooks: hooks[j](P)
def att_fallback(P):
    t=aT; R=P.raw
    L1=P.newlabel("L_fb1"); L2=P.newlabel("L_fb2")
    def qk_masked(lab):
        R("  ds_read_b128 %s, v%d"%(vr(aK,4),t)); R("  s_waitcnt lgkmcnt(0)")
        La=P.newlabel(lab+"a"); Lb=P.newlabel(lab+"b"); Lc=P.newlabel(lab+"c")
        R("  s_cmp_eq_u32 s%d, 0"%sT0); R("  s_cbranch_scc1 %s"%La)
        R("  s_cmp_eq_u32 s%d, 8"%sT0); R("  s_cbranch_scc1 %s"%Lb)
        R("  v_mfma_f32_32x32x16_bf16 %s, %s, %s, 0"%(vr(aS,16),vr(aK,4),vr(aQ,4))); R("  s_branch %s"%Lc)
        R("%s:"%La); R("  v_mfma_f32_32x32x16_bf16 %s, %s, %s, %s"%(vr(aS,16),vr(aK,4),vr(aQ,4),vr(aM0,16))); R("  s_branch %s"%Lc)
        R("%s:"%Lb); R("  v_mfma_f32_32x32x16_bf16 %s, %s, %s, %s"%(vr(aS,16),vr(aK,4),vr(aQ,4),vr(aM8,16)))
        R("%s:"%Lc); R("  s_nop 15")
    R("  s_sub_u32 s%d, 8, s%d"%(sT1,sW)); R("  s_cmp_eq_u32 s%d, 0"%sQB); R("  s_cselect_b32 s%d, s%d, 0"%(sT1,sT1))
    R("  s_mov_b32 s%d, s%d"%(sT0,sT1))
    R("  s_lshl_b32 s%d, s%d, 10"%(sT2,sT0)); R("  v_add_u32 v%d, s%d, v%d"%(t,sT2,aKA))
    R("  v_mov_b32 v%d, %s"%(t+1,hx(NEG)))
    R("%s:"%L1)
    qk_masked("L_fq1")
    for v in range(0,16,2): R("  v_max3_f32 v%d, v%d, v%d, v%d"%(t+1,aS+v,aS+v+1,t+1))
    R("  v_add_u32 v%d, 1024, v%d"%(t,t))
    R("  s_add_u32 s%d, s%d, 1"%(sT0,sT0)); R("  s_cmp_lt_u32 s%d, 9"%sT0); R("  s_cbranch_scc1 %s"%L1)
    R("  v_mov_b32 v%d, v%d"%(t+2,t+1)); R("  s_nop 1"); R("  v_permlane32_swap_b32 v%d, v%d"%(t+1,t+2)); R("  s_nop 1")
    R("  v_max_f32 v%d, v%d, v%d"%(t+1,t+1,t+2))
    for v in range(16): R("  v_mov_b32 v%d, 0"%(aO+v))
    R("  s_mov_b32 s%d, s%d"%(sT0,sT1))
    R("  s_lshl_b32 s%d, s%d, 10"%(sT2,sT0)); R("  v_add_u32 v%d, s%d, v%d"%(t,sT2,aKA))
    R("  s_mul_i32 s%d, s%d, %d"%(sT2,sT0,VSTRIDE))
    for k in range(4): R("  v_add_u32 v%d, s%d, v%d"%(t+3+k,sT2,aVA+k))
    R("%s:"%L2)
    qk_masked("L_fq2")
    for k in range(4): R("  ds_read_b64_tr_b16 %s, v%d"%(vr(aV+2*k,2),t+3+k))
    for v in range(16): R("  v_sub_f32 v%d, v%d, v%d"%(aS+v,aS+v,t+1))
    for v in range(16): R("  v_exp_f32 v%d, v%d"%(aS+v,aS+v))
    R("  s_nop 1")
    for k in range(8): R("  v_cvt_pk_bf16_f32 v%d, v%d, v%d"%(aS+k,aS+2*k,aS+2*k+1))
    R("  s_waitcnt lgkmcnt(0)"); R("  s_nop 1")
    R("  v_mfma_f32_32x32x16_bf16 %s, %s, %s, %s"%(vr(aO,16),vr(aV,4),vr(aS,4),vr(aO,16)))
    R("  v_mfma_f32_32x32x16_bf16 %s, %s, %s, %s"%(vr(aO,16),vr(aV+4,4),vr(aS+4,4),vr(aO,16)))
    R("  v_add_u32 v%d, 1024, v%d"%(t,t))
    for k in range(4): R("  v_add_u32 v%d, %d, v%d"%(t+3+k,VSTRIDE,t+3+k))
    R("  s_add_u32 s%d, s%d, 1"%(sT0,sT0)); R("  s_cmp_lt_u32 s%d, 9"%sT0); R("  s_cbranch_scc1 %s"%L2)
    R("  s_nop 15")


def att(P,cfg):
    t=aT
    P("s_barrier")
    stamp(P,cfg,"KV landed")
    hooks={1:(lambda P: f2_publish(P,aPA,aPOLL))}
    if cfg.stop_after is None: hooks.update(g2_att_hooks(cfg))
    att_main(P,cfg,hooks)
    Lok=P.newlabel("L_attok")
    P("v_mov_b32 v%d, %s"%(t,hx(f32(2.0**-30)))); P("v_mov_b32 v%d, %s"%(t+1,hx(f32(2.0**30))))
    P("v_cmp_gt_f32 vcc, v%d, v%d"%(aO+8,t)); P("v_cmp_lt_f32 s[%d:%d], v%d, v%d"%(sT0,sT1,aO+8,t+1))
    P("s_and_b64 vcc, vcc, s[%d:%d]"%(sT0,sT1)); P("s_cmp_eq_u64 vcc, -1")
    if cfg.force_fallback: P("s_cmp_eq_u32 0, 1")
    P("s_cbranch_scc1 %s"%Lok)
    P.fence()
    att_fallback(P)
    P.label(Lok)
    P("v_rcp_f32 v%d, v%d"%(t,aO+8))
    P("s_lshl_b32 s%d, s%d, 3"%(sC,sQB)); P("s_add_u32 s%d, s%d, s%d"%(sC,sC,sW)); P("s_lshl_b32 s%d, s%d, 5"%(sC,sC)); P("s_add_u32 s%d, s%d, s%d"%(sC,sC,sHD))
    P("s_lshl_b32 s%d, s%d, 2"%(sT4,sC)); P("s_add_u32 s%d, s%d, %d"%(sT4,sT4,WS_FL+FL3))
    P("s_lshl_b32 s%d, s%d, 10"%(sC,sC)); P("s_add_u32 s%d, s%d, %d"%(sC,sC,WS_O))
    for v in range(8): P("v_mul_f32 v%d, v%d, v%d"%(aO+v,aO+v,t))
    for k in range(4): P("v_cvt_pk_bf16_f32 v%d, v%d, v%d"%(aO+k,aO+2*k,aO+2*k+1))
    P("buffer_store_dwordx4 %s, v%d, %s, s%d offen sc1"%(vr(aO,4),aL16,srd(S_WS),sC), tag="o")
    stamp(P,cfg,"ATT done")

gWV=18
gHA=2; gHA2=3; gWA=4; gWA2=5; gF=20; gG=52; gS=68; gB2=84; gX=88; gPA=92; gPOLL=93; gXA=94; gT=98; gREC=114; gRR=116; gRA=117; gL16=252
def g2_indices(P):
    t=vT
    P("s_lshl_b32 s%d, s%d, 2"%(sT2B,sXCD)); P("s_lshr_b32 s%d, s%d, 3"%(sC,sSLOT)); P("s_add_u32 s%d, s%d, s%d"%(sT2B,sT2B,sC))
    P("s_and_b32 s%d, s%d, 7"%(sC2,sSLOT))
    P("s_lshr_b32 s%d, s%d, 2"%(sC,sW))
    P("s_lshl_b32 s%d, s%d, 7"%(sD,sC2))
    P("s_mul_i32 s%d, s%d, %d"%(gWB,sC,896*1024)); P("s_add_u32 s%d, s%d, s%d"%(gWB,gWB,sD))
    P("s_mul_i32 s%d, s%d, %d"%(gWOB,sC,256*1024)); P("s_add_u32 s%d, s%d, s%d"%(gWOB,gWOB,sD))
    P("s_lshr_b32 s%d, s%d, 1"%(sD,sW)); P("s_and_b32 s%d, s%d, 1"%(sD,sD)); P("s_lshl_b32 s%d, s%d, 1"%(gHB,sT2B)); P("s_add_u32 s%d, s%d, s%d"%(sD,sD,gHB))
    P("s_and_b32 s%d, s%d, 1"%(gW2K,sW)); P("s_lshl_b32 s%d, s%d, 1"%(gW2K,gW2K))
    P("s_mul_i32 s%d, s%d, 112"%(gHB,sD)); P("s_add_u32 s%d, s%d, s%d"%(gHB,gHB,gW2K))
    P("s_mul_i32 s%d, s%d, 56"%(gOB,sC)); P("s_add_u32 s%d, s%d, s%d"%(gHB,gHB,gOB)); P("s_lshl_b32 s%d, s%d, 10"%(gHB,gHB)); P("s_add_u32 s%d, s%d, %d"%(gHB,gHB,WS_H))
    P("s_lshl_b32 s%d, s%d, 5"%(gOB,sD)); P("s_add_u32 s%d, s%d, s%d"%(gOB,gOB,gW2K)); P("s_lshl_b32 s%d, s%d, 4"%(sC,sC)); P("s_add_u32 s%d, s%d, s%d"%(gOB,gOB,sC))
    P("s_lshl_b32 s%d, s%d, 10"%(gOB,gOB)); P("s_add_u32 s%d, s%d, %d"%(gOB,gOB,WS_O))
    P("s_lshl_b32 s%d, s%d, 11"%(gW2K,sW))
    P("v_lshrrev_b32 v%d, 3, v%d"%(t,vLANE)); P("v_and_b32 v%d, 7, v%d"%(t+1,vLANE))
    P("v_lshrrev_b32 v%d, 1, v%d"%(t+2,t)); P("v_and_b32 v%d, 1, v%d"%(t+2,t+2)); P("v_lshlrev_b32 v%d, 2, v%d"%(t+2,t+2))
    P("v_xor_b32 v%d, v%d, v%d"%(t+1,t+1,t+2)); P("v_lshlrev_b32 v%d, 4, v%d"%(t+1,t+1))
    P("s_and_b32 s%d, s%d, 3"%(sC,sW)); P("s_lshl_b32 s%d, s%d, 4"%(sC,sC)); P("v_add_u32 v%d, s%d, v%d"%(t,sC,t))
    P("v_lshl_add_u32 v%d, v%d, 10, v%d"%(gWV,t,t+1))
def g2_w_items(st):
    slot=WSLOT[st%5]; L=[]
    for p in range(2):
        if st<14:
            L.append(["s_add_u32 m0, s%d, %d"%(gW2K,slot+p*1024),"s_add_u32 s%d, s%d, %d"%(sT5,gWB,(64*st+8*p)*1024),
                      T("buffer_load_dwordx4 v%d, %s, s%d offen lds"%(gWV,srd(S_W2),sT5),"W%d"%st)])
        else:
            L.append(["s_add_u32 m0, s%d, %d"%(gW2K,slot+p*1024),"s_add_u32 s%d, s%d, %d"%(sT5,gWOB,(64*(st-14)+8*p)*1024),
                      T("buffer_load_dwordx4 v%d, %s, s%d offen lds"%(gWV,srd(S_WO),sT5),"W%d"%st)])
    return L
def g2_h_items(st):
    slot=HSLOT[st%4]
    so="s_add_u32 s%d, s%d, %d"%((sT5,gHB,st*4096) if st<14 else (sT5,gOB,(st-14)*4096))
    return [["s_add_u32 m0, s%d, %d"%(gW2K,slot),so,"buffer_load_dwordx4 v%d, %s, s%d offen sc1 lds"%(gL16,srd(S_WS),sT5)],
            ["s_add_u32 m0, s%d, %d"%(gW2K,slot),so,T("buffer_load_dwordx4 v%d, %s, s%d offen offset:1024 sc1 lds"%(gL16,srd(S_WS),sT5),"H%d"%st)]]
def g2_att_hooks(cfg):
    def h3(P):
        P("v_lshlrev_b32 v%d, 2, v%d"%(aPA,vLANE))
        P("s_lshl_b32 s%d, s%d, 8"%(sC,sT2B)); P("s_add_u32 s%d, s%d, %d"%(gFL,sC,WS_FL+FL2))
        poll_issue(P,aPA,aPOLL,64,gFL,"f2")
    def h5(P):
        P.wait_vm("f2"); poll(P,aPA,aPOLL,64,gFL)
        emit(P,g2_h_items(0))
    def h6(P): emit(P,g2_h_items(1))
    def h7(P): emit(P,g2_h_items(2))
    return {3:h3,5:h5,6:h6,7:h7}
def g2_reads(st,i):
    b=gF+8*((4*st+i)&3)
    hs=HSLOT[st%4]; ws=WSLOT[st%5]
    ha,ho=(gHA,hs) if hs<65536-4096 else (gHA2,hs-R[6])
    wa,wo=(gWA,ws-R[2]) if ws-R[2]<65536-8192 else (gWA2,ws-R[8])
    return ["ds_read_b128 %s, v%d offset:%d"%(vr(b,4),ha,ho+i*1024),
            "ds_read_b64_tr_b16 %s, v%d offset:%d"%(vr(b+4,2),wa,wo+i*2048),
            "ds_read_b64_tr_b16 %s, v%d offset:%d"%(vr(b+6,2),wa,wo+i*2048+1024)]
def g2_mfma(st,i):
    b=gF+8*((4*st+i)&3); acc=gG if st<14 else gS
    first=(st in (0,14) and i==0)
    return "v_mfma_f32_32x32x16_bf16 %s, %s, %s, %s"%(vr(acc,16),vr(b+4,4),vr(b,4),"0" if first else vr(acc,16))
def g2_xchg_write(P,acc,base):
    La=P.newlabel("L_xa"); Lb=P.newlabel("L_xb")
    P.wait_lgkm0()
    P("s_cmp_ge_u32 s%d, 4"%sW); P("s_cbranch_scc1 %s"%La)
    P.save_state("x")
    P("ds_write_b128 v%d, %s offset:%d"%(gXA,vr(acc+8,4),base)); P("ds_write_b128 v%d, %s offset:%d"%(gXA,vr(acc+12,4),base+1024))
    P.wait_lgkm0()
    P("s_branch %s"%Lb)
    P.label(La); P.restore_state("x")
    P("ds_write_b128 v%d, %s offset:%d"%(gXA,vr(acc,4),base)); P("ds_write_b128 v%d, %s offset:%d"%(gXA,vr(acc+4,4),base+1024))
    P.wait_lgkm0()
    for v in range(8): P("v_mov_b32 v%d, v%d"%(acc+v,acc+8+v))
    P.label(Lb)
def g2(P,cfg):
    t=gT
    P("s_and_b32 s%d, s%d, 1"%(sC,sW)); P("s_lshl_b32 s%d, s%d, 12"%(sC,sC))
    P("s_lshr_b32 s%d, s%d, 2"%(sD,sW)); P("s_lshl_b32 s%d, s%d, 13"%(sD,sD))
    P("s_add_u32 s%d, s%d, s%d"%(sC,sC,sD))
    P("v_add_u32 v%d, s%d, v%d"%(gHA,sC,gL16)); P("v_add_u32 v%d, %d, v%d"%(gHA2,R[6],gHA))
    P("v_and_b32 v%d, 15, v%d"%(t,vLANE)); P("v_lshrrev_b32 v%d, 2, v%d"%(t,t))
    P("v_and_b32 v%d, 3, v%d"%(t+1,vLANE))
    P("v_lshrrev_b32 v%d, 4, v%d"%(t+2,vLANE)); P("v_and_b32 v%d, 1, v%d"%(t+2,t+2)); P("v_lshlrev_b32 v%d, 1, v%d"%(t+2,t+2))
    P("v_lshrrev_b32 v%d, 1, v%d"%(t+3,t+1)); P("v_add_u32 v%d, v%d, v%d"%(t+2,t+2,t+3))
    P("s_lshr_b32 s%d, s%d, 1"%(sC,sW)); P("s_and_b32 s%d, s%d, 1"%(sC,sC)); P("s_lshl_b32 s%d, s%d, 2"%(sT0,sC))
    P("v_add_u32 v%d, s%d, v%d"%(t+2,sT0,t+2))
    P("v_lshrrev_b32 v%d, 1, v%d"%(t+3,t)); P("v_lshlrev_b32 v%d, 2, v%d"%(t+3,t+3)); P("v_xor_b32 v%d, v%d, v%d"%(t+2,t+2,t+3))
    P("v_lshlrev_b32 v%d, 4, v%d"%(t+2,t+2)); P("v_and_b32 v%d, 1, v%d"%(t+3,t+1)); P("v_lshl_add_u32 v%d, v%d, 3, v%d"%(t+2,t+3,t+2))
    P("v_lshrrev_b32 v%d, 5, v%d"%(t+4,vLANE))
    P("v_lshl_add_u32 v%d, v%d, 2, v%d"%(t+3,t+4,t)); P("v_lshl_add_u32 v%d, v%d, 7, v%d"%(t+2,t+3,t+2))
    P("s_add_u32 s%d, s%d, %d"%(sT1,sD,R[2])); P("v_add_u32 v%d, s%d, v%d"%(gWA,sT1,t+2)); P("v_add_u32 v%d, %d, v%d"%(gWA2,R[8]-R[2],gWA))
    P("v_add_u32 v%d, s%d, v%d"%(gXA,gW2K,gL16)); P("v_add_u32 v%d, %d, v%d"%(gXA,R[6],gXA))
    P("s_xor_b32 s%d, s%d, 8192"%(sD,gW2K)); P("v_add_u32 v%d, s%d, v%d"%(gXA+1,sD,gL16)); P("v_add_u32 v%d, %d, v%d"%(gXA+1,R[6],gXA+1))
    P("s_lshl_b32 s%d, s%d, 6"%(sD,sC2)); P("s_lshl_b32 s%d, s%d, 5"%(sC,sC)); P("s_add_u32 s%d, s%d, s%d"%(sD,sD,sC))
    P("s_lshr_b32 s%d, s%d, 2"%(sC,sW)); P("s_lshl_b32 s%d, s%d, 4"%(sC,sC)); P("s_add_u32 s%d, s%d, s%d"%(sD,sD,sC))
    P("v_lshlrev_b32 v%d, 2, v%d"%(t+3,t+4)); P("v_add_u32 v%d, s%d, v%d"%(t+3,sD,t+3)); P("v_lshlrev_b32 v%d, 1, v%d"%(gXA+3,t+3))
    P("v_lshrrev_b32 v%d, 3, v%d"%(t,vLANE)); P("s_lshl_b32 s%d, s%d, 3"%(sC,sW)); P("v_add_u32 v%d, s%d, v%d"%(t,sC,t)); P("v_lshlrev_b32 v%d, 10, v%d"%(t,t))
    P("v_and_b32 v%d, 7, v%d"%(t+1,vLANE)); P("v_lshl_add_u32 v%d, v%d, 4, v%d"%(gXA+2,t+1,t))
    P("s_lshl_b32 s%d, s%d, 16"%(sT1,sT2B)); P("s_lshl_b32 s%d, s%d, 7"%(sC,sC2)); P("s_add_u32 s%d, s%d, s%d"%(sT1,sT1,sC))
    P("v_and_b32 v%d, 31, v%d"%(gRA,vLANE)); P("v_lshlrev_b32 v%d, 3, v%d"%(gRA,gRA))
    P("s_and_b32 s%d, s%d, 1"%(sC,sW)); P("s_lshl1_add_u32 s%d, s%d, s%d"%(sC,sT2B,sC)); P("s_lshl_b32 s%d, s%d, 8"%(sC,sC)); P("s_add_u32 s%d, s%d, %d"%(sT2,sC,WS_ST))
    P.wait_vm("H0")
    P("s_barrier")
    stamp(P,cfg,"G2 start")
    emit(P,g2_reads(0,0)+g2_reads(0,1))
    emit(P,g2_h_items(3)+g2_w_items(4))
    S=Sched()
    for st in range(18):
        base=S.n()
        for i in range(4): S.main(g2_mfma(st,i))
        S.put(base+0,g2_reads(st,2)); S.put(base+1,g2_reads(st,3))
        if st<17:
            bw=[lambda P,st=st: P.wait_vm("H%d"%(st+1)), lambda P,st=st: P.wait_vm("W%d"%(st+1)),"s_barrier"]
            if cfg.stamps and st in (1,5,9,13): bw.append(lambda P,st=st: stamp(P,cfg,"G2 bar%d"%st))
            S.before(base+2,bw)
            S.put(base+2,g2_reads(st+1,0)); S.put(base+3,g2_reads(st+1,1))
            if st>=1:
                D=[]
                if st+3<18: D+=g2_h_items(st+3)
                if st+4<18: D+=g2_w_items(st+4)
                if st==11: S.put(base+2,[lambda P: P.wait_vm("f3"), lambda P: poll(P,gPA,gPOLL,64,gFL)])
                pos=[base+2,base+3,base+4,base+5]
                for x,g in zip(D,pos): S.put(g,x)
            else:
                pass
        if st==0:
            S.put(base+0,["global_load_dwordx2 %s, v%d, s[%d:%d]"%(vr(gB2,2),gXA+3,S_B2,S_B2+1)])
            S.put(base+1,["global_load_dwordx2 %s, v%d, s[%d:%d] offset:16"%(vr(gB2+2,2),gXA+3,S_B2,S_B2+1)])
            S.put(base+3,["buffer_load_dwordx4 %s, v%d, %s, s%d offen"%(vr(gX,4),gXA+2,srd(S_X),sT1)])
        if st==2: S.put(base+0,lambda P: rec_issue(P,gREC,gRA,sT2,"grec"))
        if st==5: S.put(base+0,[lambda P: rec_poll(P,gREC,gRA,sT2,"grec")]+rr_of(None,gREC,gRR+2,gRR))
        if st==1:
            S.put(base+3,[lambda P: P.wait_vm("o"),"v_mov_b32 v%d, 0"%gPA,"v_mov_b32 v%d, 1"%gPOLL, lambda P: flag_store(P,gPA,gPOLL,sT4)])
        if st==8:
            S.put(base+1,["v_lshlrev_b32 v%d, 2, v%d"%(gPA,vLANE),"s_lshl_b32 s%d, s%d, 8"%(sC,sT2B),"s_add_u32 s%d, s%d, %d"%(gFL,sC,WS_FL+FL3),
                          lambda P: poll_issue(P,gPA,gPOLL,64,gFL,"f3")])
        if st==14:
            S.put(base+0,lambda P: g2_xchg_write(P,gG,LDS_XG-R[6]))
    S.emit(P)
    stamp(P,cfg,"G2 loop done")
    P("ds_read_b128 %s, v%d offset:%d"%(vr(t,4),gXA+1,LDS_XG-R[6])); P("ds_read_b128 %s, v%d offset:%d"%(vr(t+4,4),gXA+1,LDS_XG-R[6]+1024))
    u=t+8
    for k in range(4):
        P("v_lshlrev_b32 v%d, 16, v%d"%(u+2*k,gB2+k)); P("v_and_b32 v%d, s%d, v%d"%(u+2*k+1,sMASKHI,gB2+k))
    for v in range(8): P("v_add_f32 v%d, v%d, v%d"%(gG+v,gG+v,t+v))
    for v in range(8): P("v_fma_f32 v%d, v%d, v%d, v%d"%(gG+v,gG+v,gRR,u+v))
    g2_xchg_write(P,gS,LDS_XS-R[6])
    P("s_barrier")
    P("ds_read_b128 %s, v%d offset:%d"%(vr(t,4),gXA+1,LDS_XS-R[6])); P("ds_read_b128 %s, v%d offset:%d"%(vr(t+4,4),gXA+1,LDS_XS-R[6]+1024))
    for v in range(8): P("v_mul_f32 v%d, %s, v%d"%(u+v,hx(f32(-1.4426950408889634)),gG+v))
    for v in range(8): P("v_exp_f32 v%d, v%d"%(u+v,u+v))
    for v in range(8): P("v_add_f32 v%d, 1.0, v%d"%(u+v,u+v))
    for v in range(8): P("v_rcp_f32 v%d, v%d"%(u+v,u+v))
    for v in range(8): P("v_mul_f32 v%d, v%d, v%d"%(gG+v,gG+v,u+v))
    for v in range(8): P("v_add_f32 v%d, v%d, v%d"%(gS+v,gS+v,t+v))
    for v in range(8): P("v_mul_f32 v%d, v%d, v%d"%(gS+v,gS+v,gG+v))
    for k in range(4): P("v_cvt_pk_bf16_f32 v%d, v%d, v%d"%(gS+k,gS+2*k,gS+2*k+1))
    P("v_and_b32 v%d, 31, v%d"%(t,vLANE)); P("s_and_b32 s%d, s%d, 1"%(sC,sW)); P("s_lshl_b32 s%d, s%d, 5"%(sC,sC)); P("v_add_u32 v%d, s%d, v%d"%(t,sC,t))
    P("v_mul_u32_u24 v%d, %d, v%d"%(t,PTP,t))
    P("s_lshr_b32 s%d, s%d, 1"%(sC,sW)); P("s_and_b32 s%d, s%d, 1"%(sC,sC)); P("s_lshl_b32 s%d, s%d, 6"%(sC,sC))
    P("s_lshr_b32 s%d, s%d, 2"%(sD,sW)); P("s_lshl_b32 s%d, s%d, 5"%(sD,sD)); P("s_add_u32 s%d, s%d, s%d"%(sC,sC,sD)); P("s_add_u32 s%d, s%d, %d"%(sC,sC,LDS_PT))
    P("v_lshrrev_b32 v%d, 5, v%d"%(t+1,vLANE)); P("v_lshl_add_u32 v%d, v%d, 3, v%d"%(t,t+1,t)); P("v_add_u32 v%d, s%d, v%d"%(t,sC,t))
    P("ds_write_b64 v%d, %s"%(t,vr(gS,2))); P("ds_write_b64 v%d, %s offset:16"%(t,vr(gS+2,2)))
    P("v_lshrrev_b32 v%d, 3, v%d"%(t+2,vLANE)); P("s_lshl_b32 s%d, s%d, 3"%(sC,sW)); P("v_add_u32 v%d, s%d, v%d"%(t+2,sC,t+2)); P("v_mul_u32_u24 v%d, %d, v%d"%(t+2,PTP,t+2))
    P("v_and_b32 v%d, 7, v%d"%(t+3,vLANE)); P("v_lshl_add_u32 v%d, v%d, 4, v%d"%(t+2,t+3,t+2)); P("v_add_u32 v%d, %d, v%d"%(t+2,LDS_PT,t+2))
    for k in range(4):
        P("v_lshlrev_b32 v%d, 16, v%d"%(u+2*k,gX+k)); P("v_and_b32 v%d, s%d, v%d"%(u+2*k+1,sMASKHI,gX+k))
    P.wait_lgkm0()
    P("s_barrier")
    P("ds_read_b128 %s, v%d"%(vr(t+4,4),t+2))
    for k in range(4):
        P("v_lshlrev_b32 v%d, 16, v%d"%(gG+2*k,t+4+k)); P("v_and_b32 v%d, s%d, v%d"%(gG+2*k+1,sMASKHI,t+4+k))
    for v in range(8): P("v_add_f32 v%d, v%d, v%d"%(u+v,u+v,gG+v))
    for k in range(4): P("v_cvt_pk_bf16_f32 v%d, v%d, v%d"%(u+k,u+2*k,u+2*k+1))
    P("buffer_store_dwordx4 %s, v%d, %s, s%d offen"%(vr(u,4),gXA+2,srd(S_OUT),sT1))
    stamp(P,cfg,"end")

def build(cfg):
    P=Prog()
    setup(P,cfg)
    p1(P,cfg)
    if cfg.stop_after!='p1': att(P,cfg)
    if cfg.stop_after is None: g2(P,cfg)
    stamp_flush(P,cfg)
    if cfg.dbgtime:
        L=P.newlabel("L_nodbg")
        P("s_cmp_lg_u32 s%d, 0"%sW); P("s_cbranch_scc1 %s"%L); P("s_cmp_ge_u32 s2, 6"); P("s_cbranch_scc1 %s"%L)
        P("s_memrealtime s[66:67]"); P("s_memtime s[68:69]"); P("s_waitcnt lgkmcnt(0)")
        P("s_sub_u32 s66, s66, s70"); P("s_sub_u32 s68, s68, s72")
        P("v_mov_b32 v2, s66"); P("v_mov_b32 v3, s68"); P("s_lshl_b32 s66, s2, 3"); P("s_add_u32 s66, s66, 8"); P("v_mov_b32 v4, s66")
        P("s_mov_b64 exec, 1")
        P("global_store_dwordx2 v4, v[2:3], s[%d:%d]"%(S_DBG,S_DBG+1))
        P("s_mov_b64 exec, -1")
        P.label(L)
    P.wait_vm0()
    P.label("L_end")
    P("s_endpgm")
    body=P.finalize()
    hdr=open("recurrent_scan__sliding_block__mixer_channel_mlp__prompt.s.ref").read().split("; Override")[0]
    s=hdr+"; Generated by my own generator script.\n"
    s+="; @launch grid=(256,1,1) block=(512,1,1) lds=%d\n"%LDS_TOTAL
    s+='.amdgcn_target "amdgcn-amd-amdhsa--gfx950"\n.text\n.globl %s\n.p2align 8\n.type %s,@function\n%s:\n'%(KNAME,KNAME,KNAME)
    s+=body
    s+='.section .rodata,"a"\n.p2align 6\n.amdhsa_kernel %s\n  .amdhsa_next_free_vgpr 256\n  .amdhsa_next_free_sgpr 102\n  .amdhsa_accum_offset 256\n  .amdhsa_group_segment_fixed_size 0\n  .amdhsa_kernarg_size 88\n  .amdhsa_user_sgpr_count 2\n  .amdhsa_user_sgpr_kernarg_segment_ptr 1\n  .amdhsa_system_sgpr_workgroup_id_x 1\n.end_amdhsa_kernel\n'%KNAME
    return s,P.stats

if __name__=="__main__":
    cfg=Cfg()
    out=sys.argv[1] if len(sys.argv)>1 else "k.s"
    for a in sys.argv[2:]:
        k,v=a.split("=")
        setattr(cfg,k,{"0":False,"1":True,"None":None}.get(v,v))
    s,st=build(cfg)
    open(out,"w").write(s)
    if cfg.stamps:
        import json; json.dump(STAMPS,open(out.replace(".s",".json"),"w"))
    print(out,len(s),"bytes",st)
```

```python
import sys, math, struct
from ir import Prog, Ins
KNAME="recurrent_scan__sliding_block__mixer_channel_mlp__prompt_kernel"
def f32(x): return struct.unpack("<I", struct.pack("<f", x))[0]
def hx(x): return "0x%08x" % (x & 0xffffffff)
WS_QKV=0
WS_H=96*64*1024
WS_O=WS_H+64*112*1024
WS_FL=WS_O+64*32*1024
FL1=0; FL2=12288; FL3=20480; FL_BYTES=32768
WS_ST=WS_FL+FL_BYTES
ST_BYTES=16384
WS_DBG=WS_ST+ST_BYTES
WS_SIZE=WS_DBG+(1<<20)
R=[16384*i for i in range(10)]
LDS_WQ=0
LDS_CS=R[5]
LDS_W2=98304
LDS_K=R[7]; LDS_V=R[8]; VSTRIDE=1088; LDS_Q=LDS_V+16*VSTRIDE
HSLOT=[R[0],R[1],R[6],R[7]]
WSLOT=[R[2],R[3],R[4],R[5],R[8]]
LDS_XG=R[9]; LDS_XS=R[6]; LDS_PT=R[8]; PTP=144
LDS_TOTAL=163840
SPIN_MAX=200000
CODE_SLICE=896
S_X=4; S_U0=8; S_U1=12; S_W1=16; S_WS=20; S_W2=24; S_WO=28; S_OUT=32
S_B1=36; S_B2=38; S_DBG=40
sW=42; sMW=43; sNW=44; sTB=45; sG=46; sJ=47
sU0=48; sU1=49; sU2=50; sUQ=51
sT0=52; sT1=53; sT2=54; sT3=55; sT4=56; sT5=57; sT6=58; sT7=59
gWB=60; gWOB=61; gHB=62; gOB=63; gW2K=64; gFL=65; gROT=70; gWT=71; gHT=72
sMASKHI=74; sGB=75; sLO32=76
sXOFF=78; sW0OFF=79; sW1OFF=80; sPITCH1=81; sW2OFF=82; sWQOFF=83
sST0=84; sST1=85; sST2=86; sST3=87
sXCD=88; sSLOT=89; sQSC0=90; sQSC1=91
sHD=92; sQB=93; sT2B=94; sC2=95; sISH=96
sA=97; sB=98; sC=99; sD=100; sE=101
def srd(b): return "s[%d:%d]"%(b,b+3)
def vr(b,n=None):
    if n is None or n==1: return "v%d"%b
    return "v[%d:%d]"%(b,b+n-1)
vSTAMP=0
class Cfg:
    stop_after=None
    stamps=False
    touch=True
    force_fallback=False
    dbgtime=False
STAMPS={}
LIGHT=[66,68,0]
def stamp(P,cfg,name):
    if not cfg.stamps: return
    only=getattr(cfg,'only',None)
    if only and name.replace(" ","_") not in only.split(","): return
    if name not in STAMPS: STAMPS[name]=len(STAMPS)
    idx=STAMPS[name]; assert idx<31
    if getattr(cfg,'light',False):
        assert idx<3
        P.raw("  s_memtime s[%d:%d]"%(LIGHT[idx],LIGHT[idx]+1))
        return
    P.wait_lgkm0()
    P.raw("  s_memrealtime s[66:67]")
    P.raw("  s_memtime s[68:69]")
    P.raw("  s_waitcnt lgkmcnt(0)")
    P.raw("  v_writelane_b32 v%d, s66, %d"%(vSTAMP,idx))
    P.raw("  v_writelane_b32 v%d, s68, %d"%(vSTAMP,idx+32))
def stamp_flush(P,cfg):
    if not cfg.stamps: return
    if getattr(cfg,'light',False):
        P.raw("  s_waitcnt lgkmcnt(0)")
        for n,idx in STAMPS.items():
            P.raw("  v_writelane_b32 v%d, s%d, %d"%(vSTAMP,LIGHT[idx],idx+32))
    P("s_lshl_b32 s66, s2, 3"); P("s_add_u32 s66, s66, s%d"%sW); P("s_lshl_b32 s66, s66, 8"); P("s_add_u32 s66, s66, %d"%WS_DBG)
    P("v_lshlrev_b32 v2, 2, v1")
    P("buffer_store_dword v%d, v2, %s, s66 offen"%(vSTAMP,srd(S_WS)))
def setexec(P,nl):
    if nl>=64: P("s_mov_b64 exec, -1")
    elif nl>=32:
        P("s_mov_b32 exec_lo, 0xffffffff"); P("s_mov_b32 exec_hi, %s"%hex((1<<(nl-32))-1))
    else: P("s_mov_b64 exec, %s"%hex((1<<nl)-1))

def setup(P,cfg):
    P("s_cmp_ge_u32 s2, 256")
    P("s_cbranch_scc1 L_end")
    if cfg.stamps or cfg.dbgtime:
        P("s_memrealtime s[92:93]"); P("s_memtime s[94:95]")
    if getattr(cfg,'codepf',True):
        P("s_getpc_b64 s[52:53]")
        P.raw("L_pc:")
        P("s_lshr_b32 s54, s2, 3"); P("s_mul_i32 s54, s54, %d"%CODE_SLICE)
        P("v_and_b32 v3, 63, v0"); P("v_lshlrev_b32 v3, 7, v3"); P("v_add_u32 v3, s54, v3")
        P.raw("  v_min_u32 v3, L_end-L_pc, v3")
        P("v_cmp_gt_u32 vcc, %d, v0"%(CODE_SLICE//128))
        P("s_and_saveexec_b64 s[54:55], vcc")
        Lp=P.newlabel("L_nopf")
        P("s_cbranch_execz %s"%Lp)
        P.raw("  global_load_dword v247, v3, s[52:53]")
        P.label(Lp)
        P("s_mov_b64 exec, -1")
    for dst,off in ((S_X,0),(S_U0,8),(S_W1,32),(S_WS,80),(S_DBG,72),(S_B1,40),(S_W2,48),(S_WO,16),(S_OUT,64),(S_B2,56)):
        P("s_load_dwordx2 s[%d:%d], s[0:1], %d"%(dst,dst+1,off))
    P("v_lshrrev_b32 v2, 6, v0")
    P("v_and_b32 v1, 63, v0")
    P("v_readfirstlane_b32 s%d, v2"%sW)
    P("s_lshr_b32 s%d, s2, 5"%sA); P("s_and_b32 s%d, s2, 4"%sB); P("s_lshl1_add_u32 s%d, s%d, s%d"%(sTB,sB,sA))
    P("s_and_b32 s%d, s2, 3"%sG); P("s_bfe_u32 s%d, s2, 0x20003"%sJ)
    for b_,size in ((S_X,2097152),(S_U0,1572864),(S_W1,1835008),(S_WS,WS_SIZE)):
        P("s_mov_b32 s%d, %d"%(b_+2,size)); P("s_mov_b32 s%d, 0x00020000"%(b_+3))
def setup_rest(P,cfg):
    for b_,size in ((S_W2,1835008),(S_WO,524288),(S_OUT,2097152)):
        P("s_mov_b32 s%d, %d"%(b_+2,size)); P("s_mov_b32 s%d, 0x00020000"%(b_+3))
    P("s_and_b32 s%d, s2, 7"%sXCD); P("s_lshr_b32 s%d, s2, 3"%sSLOT)
    P("s_mov_b32 s%d, -1"%sLO32); P("s_mov_b32 s%d, 0"%(sLO32+1))

def check_go(P,vgo,vz):
    Ls=P.newlabel("L_gospin"); Lk=P.newlabel("L_gook")
    P("s_mov_b32 s%d, %d"%(sT7,SPIN_MAX))
    P.label(Ls)
    P("v_readfirstlane_b32 s%d, v%d"%(sT6,vgo)); P("s_cmp_lg_u32 s%d, 0"%sT6); P("s_cbranch_scc1 %s"%Lk)
    P("s_sub_u32 s%d, s%d, 1"%(sT7,sT7)); P("s_cmp_eq_u32 s%d, 0"%sT7); P("s_cbranch_scc1 %s"%Lk)
    P.raw("  global_load_dword v%d, v%d, s[%d:%d] sc1"%(vgo,vz,S_DBG,S_DBG+1)); P.raw("  s_waitcnt vmcnt(0)")
    P("s_branch %s"%Ls)
    P.label(Lk)
def flag_store(P,vaddr,vone,soff,nl=1):
    setexec(P,nl)
    P("buffer_store_dword v%d, v%d, %s, s%d offen sc1"%(vone,vaddr,srd(S_WS),soff))
    P("s_mov_b64 exec, -1")
def poll(P, areg, dreg, nl, soff):
    Ls=P.newlabel("L_spin"); Lk=P.newlabel("L_ok")
    P("s_mov_b32 s%d, %d"%(sT7,SPIN_MAX))
    P.label(Ls)
    setexec(P,nl)
    P("v_cmp_ne_u32 vcc, 1, v%d"%dreg)
    P("s_mov_b64 exec, -1")
    P("s_cbranch_vccz %s"%Lk)
    P("s_sub_u32 s%d, s%d, 1"%(sT7,sT7)); P("s_cmp_eq_u32 s%d, 0"%sT7); P("s_cbranch_scc1 %s"%Lk)
    setexec(P,nl)
    P.raw("  buffer_load_dword v%d, v%d, %s, s%d offen sc1"%(dreg,areg,srd(S_WS),soff))
    P("s_mov_b64 exec, -1")
    P.raw("  s_waitcnt vmcnt(0)")
    P("s_branch %s"%Ls)
    P.label(Lk)
def poll_issue(P, areg, dreg, nl, soff, tag):
    setexec(P,nl)
    P("buffer_load_dword v%d, v%d, %s, s%d offen sc1"%(dreg,areg,srd(S_WS),soff), tag=tag)
    P("s_mov_b64 exec, -1")

from collections import defaultdict
def icost(s):
    if callable(s): return 0
    if isinstance(s,(list,tuple)): return sum(icost(x) for x in s)
    op=s.split()[0]
    if op.startswith("v_mfma"): return 8
    if op in("v_exp_f32","v_rcp_f32","v_rsq_f32"): return 8
    if op.startswith("v_") or op.startswith("ds_") or op.startswith("buffer_") or op.startswith("global_"): return 4
    return 1
def emit(P,L):
    for x in L:
        if callable(x): x(P)
        elif isinstance(x,(list,tuple)): emit(P,x)
        else: P(x)
class Sched:
    def __init__(self): self.m=[]; self.pre=defaultdict(list); self.post=defaultdict(list)
    def main(self,x): self.m.append(x); return len(self.m)-1
    def n(self): return len(self.m)
    def before(self,g,x): self.pre[g].append(x)
    def put(self,g,x): self.post[g].append(x)
    def spread(self,items,g0,g1):
        tot=sum(max(icost(x),1) for x in items); acc=0; n=g1-g0+1
        for x in items:
            c=max(icost(x),1); g=g0+min(n-1,int((acc+c*0.5)*n/tot)); self.post[g].append(x); acc+=c
    def emit(self,P):
        for g,m in enumerate(self.m):
            emit(P,self.pre[g]); emit(P,[m]); emit(P,self.post[g])
        for g in sorted(set(list(self.pre)+list(self.post))):
            if g>=len(self.m): emit(P,self.pre[g]); emit(P,self.post[g])
def T(text,tag): return lambda P: P(text,tag=tag)

vLANE=1; vSEL=2; vXA=6; vWA=10; vX0=14; vX1=15; vWQ=16; vW1=17; vU1=18; vWQT=19
vREC=20
vGA=22; vGB=23
vCS0=24; vCS1=28; vWF=32; vACC0=48; vACC1=64; vACC2=80
vAUGX=96; vAUGW=100; vRS0=104; vRS1=105; vB1a=107; vB1b=108; vB1c=109
vT=110
vRECA=122; vCSW=123; vGO=124; vCSR=125
vZ=126; vL16=127
vXF=128
vROW=252
def X(k): return vr(vXF+4*k,4)
WBUF=[32,40,80,88]
SEG=[0,0,65536,65536,131072,0,0,65536]
IMM=[0,32768,0,32768,0,0,32768,0]
SLOT=[0,32768,65536,98304,131072,0,32768,65536]
sP64=sPITCH1
sW1CUR=sW1OFF
GELU_A=-2*0.7978845608028654*1.4426950408889634
GELU_B=GELU_A*0.044715

def dma_stage(st):
    slot=SLOT[st]; L=[]
    L.append(["s_add_u32 m0, s%d, %d"%(sA,slot),"s_add_u32 s%d, s%d, %d"%(sC,sXOFF,st*128),
              "buffer_load_dwordx4 v%d, %s, s%d offen lds"%(vX0,srd(S_X),sC)])
    L.append(["s_add_u32 m0, s%d, %d"%(sA,slot+1024),"s_add_u32 s%d, s%d, %d"%(sC,sXOFF,st*128),
              "buffer_load_dwordx4 v%d, %s, s%d offen lds"%(vX1,srd(S_X),sC)])
    L.append(["s_add_u32 m0, s%d, %d"%(sB,slot+16384),"s_add_u32 s%d, s%d, %d"%(sC,sW0OFF,st*64*3072),
              "buffer_load_dwordx4 v%d, %s, s%d offen lds"%(vWQ,srd(S_U0),sC)])
    L.append(["s_add_u32 m0, s%d, %d"%(sB,slot+24576),
              T("buffer_load_dwordx4 v%d, %s, s%d offen lds"%(vU1,srd(S_U1),sW1CUR),"st%d"%st),
              "s_add_u32 s%d, s%d, s%d"%(sW1CUR,sW1CUR,sP64)])
    return L
def dma_w2(half):
    return [["s_add_u32 m0, s%d, %d"%(sB,LDS_W2+q*8192),"s_add_u32 s%d, s%d, %d"%(sC,sW2OFF,q*64*3584),
             T("buffer_load_dwordx4 v%d, %s, s%d offen lds"%(vW1,srd(S_W1),sC),"w2_%d"%half)] for q in range(4*half,4*half+4)]
def dma_wq():
    return [["s_lshl1_add_u32 s%d, s%d, %d"%(sC,sA,LDS_WQ+p*1024) if False else "s_lshl_b32 s%d, s%d, 12"%(sC,sW),"s_add_u32 m0, s%d, %d"%(sC,LDS_WQ+p*1024),
             "s_add_u32 s%d, s%d, %d"%(sC,sWQOFF,p*16*3584),
             T("buffer_load_dwordx4 v%d, %s, s%d offen lds"%(vWQT,srd(S_W1),sC),"wq")] for p in range(4)]

def p1_prologue(P,cfg):
    t=vT
    P("v_lshrrev_b32 v%d, 3, v%d"%(t,vLANE))
    P("v_lshrrev_b32 v%d, 4, v%d"%(t+1,vLANE))
    P("v_and_b32 v%d, 7, v%d"%(t+2,vLANE))
    P("v_xor_b32 v%d, v%d, v%d"%(t+3,t+2,t+1))
    P("v_lshlrev_b32 v%d, 10, v%d"%(t+4,t))
    P("v_lshl_add_u32 v%d, v%d, 4, v%d"%(vX0,t+3,t+4))
    P("s_movk_i32 s%d, 0x2000"%sC)
    P("v_xad_u32 v%d, v%d, 64, s%d"%(vX1,vX0,sC))
    P("v_lshlrev_b32 v%d, 4, v%d"%(vL16,vLANE))
    P("s_lshl_b32 s%d, s%d, 17"%(sXOFF,sTB)); P("s_lshl_b32 s%d, s%d, 14"%(sC,sW)); P("s_add_u32 s%d, s%d, s%d"%(sXOFF,sXOFF,sC))
    P("s_lshl_b32 s%d, s%d, 11"%(sA,sW))
    P("s_lshl_b32 s%d, s%d, 10"%(sB,sW))
    P("s_lshl2_add_u32 s%d, s%d, s%d"%(sD,sG,sJ)); P("s_lshl_b32 s%d, s%d, 3"%(sD,sD)); P("s_add_u32 s%d, s%d, s%d"%(sD,sD,sW))
    P("s_lshl_b32 s%d, s%d, 7"%(sT3,sTB)); P("s_add_u32 s%d, s%d, s%d"%(sT3,sT3,sD))
    P("s_lshl_b32 s%d, s%d, 10"%(sD,sT3))
    P("s_lshl_b32 s%d, s%d, 1"%(sT0,sJ)); P("s_add_u32 s%d, s%d, 2"%(sT1,sJ)); P("s_min_u32 s%d, s%d, s%d"%(sT1,sT0,sT1))
    P("s_mul_i32 s%d, s%d, 6"%(sU0,sG)); P("s_add_u32 s%d, s%d, s%d"%(sU0,sU0,sT1))
    P("s_sub_u32 s%d, s%d, 1"%(sT0,sT0)); P("s_max_i32 s%d, s%d, s%d"%(sT0,sT0,sJ))
    P("s_mul_i32 s%d, s%d, 7"%(sUQ,sG)); P("s_add_u32 s%d, s%d, s%d"%(sU2,sUQ,sT0)); P("s_add_u32 s%d, s%d, 6"%(sUQ,sUQ))
    P("s_add_u32 s%d, s%d, 1"%(sT0,sU0)); P("s_sub_u32 s%d, s%d, 1"%(sT1,sU2))
    P("s_movk_i32 s%d, 3584"%sT2); P("s_movk_i32 s%d, 3072"%sT4)
    P("s_cmp_lt_u32 s%d, 2"%sJ)
    P("s_cselect_b32 s%d, s%d, s%d"%(sU1,sT0,sT1))
    P("s_cselect_b32 s%d, 0, 1"%sISH)
    P("s_cselect_b32 s%d, s%d, s%d"%(sPITCH1,sT4,sT2))
    P("s_cselect_b32 s%d, s%d, s%d"%(S_U1+2,S_U0+2,S_W1+2))
    P("s_mov_b32 s%d, 0x00020000"%(S_U1+3))
    P("v_lshlrev_b32 v%d, 4, v%d"%(t+2,t+2)); P("v_and_b32 v%d, 1, v%d"%(t+1,t+1)); P("v_lshlrev_b32 v%d, 6, v%d"%(t+1,t+1))
    P("v_xor_b32 v%d, v%d, v%d"%(t+2,t+2,t+1))
    P("v_mad_u32_u24 v%d, v%d, s%d, v%d"%(vWQ,t,sT4,t+2))
    P("v_mad_u32_u24 v%d, v%d, s%d, v%d"%(vW1,t,sT2,t+2))
    P("v_mad_u32_u24 v%d, v%d, s%d, v%d"%(vU1,t,sPITCH1,t+2))
    P("s_lshl_b32 s%d, s%d, 7"%(sW0OFF,sU0)); P("s_mul_i32 s%d, s%d, 24576"%(sC,sW)); P("s_add_u32 s%d, s%d, s%d"%(sW0OFF,sW0OFF,sC))
    P("s_lshl_b32 s%d, s%d, 3"%(sC,sW)); P("s_mul_i32 s%d, s%d, s%d"%(sC,sC,sPITCH1)); P("s_lshl_b32 s%d, s%d, 7"%(sW1OFF,sU1)); P("s_add_u32 s%d, s%d, s%d"%(sW1OFF,sW1OFF,sC))
    P("s_lshl_b32 s%d, s%d, 6"%(sP64,sPITCH1))
    P("s_waitcnt lgkmcnt(0)")
    if cfg.stamps:
        P.raw("  v_mov_b32 v0, 0"); P.raw("  v_writelane_b32 v0, s92, 31"); P.raw("  v_writelane_b32 v0, s94, 63")
    if cfg.dbgtime:
        P("s_mov_b32 s70, s92"); P("s_mov_b32 s72, s94")
    P("s_cmp_lt_u32 s%d, 2"%sJ)
    P("s_cselect_b32 s%d, s%d, s%d"%(S_U1,S_U0,S_W1)); P("s_cselect_b32 s%d, s%d, s%d"%(S_U1+1,S_U0+1,S_W1+1))
    L=P.newlabel("L_noclr")
    P("s_cmp_lg_u32 s2, 0"); P("s_cbranch_scc1 %s"%L)
    for k in range(4): P.raw("  v_mov_b32 v%d, 0"%(t+8+k))
    P.raw("  s_lshl_b32 s%d, s%d, 12"%(sC,sW)); P.raw("  s_add_u32 s%d, s%d, %d"%(sC,sC,WS_FL))
    for i in range(4):
        P.raw("  buffer_store_dwordx4 %s, v%d, %s, s%d offen offset:%d sc1"%(vr(t+8,4),vL16,srd(S_WS),sC,i*1024))
    P.raw("  s_nop 1")
    for k in range(4): P.raw("  v_mov_b32 v%d, -1.0"%(t+4+k))
    P.raw("  s_add_u32 s%d, s%d, %d"%(sC,sA,WS_ST))
    for i in range(2):
        P.raw("  buffer_store_dwordx4 %s, v%d, %s, s%d offen offset:%d sc1"%(vr(t+4,4),vL16,srd(S_WS),sC,i*1024))
    P.raw("  s_nop 1")
    P.label(L)
    P("buffer_load_dwordx4 %s, v%d, %s, s%d offen"%(vr(vROW,4),vL16,srd(S_X),sD), tag="row")
    emit(P,dma_stage(0))
    L=P.newlabel("L_nogo")
    P("s_cmp_lg_u32 s2, 0"); P("s_cbranch_scc1 %s"%L)
    P.raw("  s_waitcnt vmcnt(5)")
    P.raw("  s_barrier")
    P.raw("  s_cmp_lg_u32 s%d, 0"%sW); P.raw("  s_cbranch_scc1 %s"%L)
    P.raw("  v_mov_b32 v%d, 0"%(t+8)); P.raw("  v_mov_b32 v%d, 1"%(t+9))
    P.raw("  s_mov_b64 exec, 1")
    P.raw("  global_store_dword v%d, v%d, s[%d:%d] sc1"%(t+8,t+9,S_DBG,S_DBG+1))
    P.raw("  s_mov_b64 exec, -1")
    P.label(L)
    emit(P,dma_stage(1))
    P("s_and_b32 s%d, s%d, 3"%(sMW,sW)); P("s_lshr_b32 s%d, s%d, 2"%(sNW,sW))
    P("s_xor_b32 s%d, s%d, s%d"%(sC,sMW,sNW))
    P("v_lshrrev_b32 v%d, 5, v%d"%(t+1,vLANE))
    P("v_bfe_u32 v%d, v%d, 1, 3"%(t+2,vLANE))
    P("v_xor_b32 v%d, v%d, v%d"%(t+2,t+2,t+1))
    P("s_lshl_b32 s%d, s%d, 1"%(sD,sC)); P("v_xor_b32 v%d, s%d, v%d"%(t+2,sD,t+2))
    P("v_and_b32 v%d, 31, v%d"%(t,vLANE)); P("v_lshlrev_b32 v%d, 7, v%d"%(t+3,t))
    P("v_lshl_add_u32 v%d, v%d, 4, v%d"%(t+3,t+2,t+3))
    P("s_lshl_b32 s%d, s%d, 12"%(sD,sMW)); P("v_add_u32 v%d, s%d, v%d"%(vXA,sD,t+3))
    for i in range(1,4): P("v_xor_b32 v%d, %d, v%d"%(vXA+i,32*i,vXA))
    P("v_and_b32 v%d, 3, v%d"%(t+2,vLANE)); P("v_lshlrev_b32 v%d, 3, v%d"%(t+2,t+2))
    P("v_bfe_u32 v%d, v%d, 4, 1"%(t+3,vLANE)); P("v_lshl_or_b32 v%d, v%d, 5, v%d"%(t+2,t+3,t+2))
    P("v_bfe_u32 v%d, v%d, 3, 1"%(t+3,vLANE)); P("v_xor_b32 v%d, s%d, v%d"%(t+3,sNW,t+3)); P("v_lshl_or_b32 v%d, v%d, 6, v%d"%(t+2,t+3,t+2))
    P("v_bfe_u32 v%d, v%d, 2, 2"%(t+3,vLANE)); P("v_lshl_or_b32 v%d, v%d, 7, v%d"%(t+2,t+3,t+2))
    P("v_lshl_or_b32 v%d, v%d, 10, v%d"%(t+2,t+1,t+2))
    P("s_lshl_b32 s%d, s%d, 11"%(sD,sC)); P("v_or_b32 v%d, s%d, v%d"%(vWA,sD,t+2))
    for i in range(1,4): P("v_xor_b32 v%d, %s, v%d"%(vWA+i,hx(2048*i),vWA))
    m=0
    for b in (0,32,8,40,20,52,28,60): m|=1<<b
    P("s_mov_b32 s52, %s"%hx(m&0xffffffff)); P("s_mov_b32 s53, %s"%hx(m>>32))
    P("v_mov_b32 v%d, 0x3f803f80"%(t+4))
    for r in range(4): P("v_cndmask_b32 v%d, 0, v%d, s[52:53]"%(vSEL+r,t+4))
    s_=248; q_=249
    P("v_dot2_f32_bf16 v%d, v%d, v%d, 0"%(s_,vROW,t+4)); P("v_dot2_f32_bf16 v%d, v%d, v%d, 0"%(q_,vROW,vROW))
    for k in range(1,4):
        P("v_dot2_f32_bf16 v%d, v%d, v%d, v%d"%(s_,vROW+k,t+4,s_)); P("v_dot2_f32_bf16 v%d, v%d, v%d, v%d"%(q_,vROW+k,vROW+k,q_))
    P("v_mov_b32 v%d, 0"%vZ)
    emit(P,dma_stage(2))
def stat_reduce():
    s_=248; q_=249; L=[]
    class Q:
        def __call__(self,x): L.append(x)
    P=Q()
    for sh in ("row_shr:1","row_shr:2","row_shr:4","row_shr:8"):
        for r in (s_,q_): P("v_add_f32_dpp v%d, v%d, v%d %s row_mask:0xf bank_mask:0xf bound_ctrl:0"%(r,r,r,sh))
    for r in (s_,q_): P("v_add_f32_dpp v%d, v%d, v%d row_bcast:15 row_mask:0xa bank_mask:0xf"%(r,r,r))
    for r in (s_,q_): P("v_add_f32_dpp v%d, v%d, v%d row_bcast:31 row_mask:0xc bank_mask:0xf"%(r,r,r))
    P("v_mul_f32 v250, %s, v%d"%(hx(f32(1/512.)),s_))
    P("v_mul_f32 v%d, %s, v%d"%(q_,hx(f32(1/512.)),q_))
    P("v_fma_f32 v%d, -v250, v250, v%d"%(q_,q_))
    P("v_max_f32 v251, 0, v%d"%q_)
    return L

def p1_late_setup(cfg):
    t=vT; L=[]
    L+=["s_mov_b32 s%d, 0xffff0000"%sMASKHI,
        "s_lshl_b32 s%d, s%d, 7"%(sW2OFF,sU2),"s_mul_i32 s%d, s%d, 28672"%(sD,sW),"s_add_u32 s%d, s%d, s%d"%(sW2OFF,sW2OFF,sD),
        "s_lshl_b32 s%d, s%d, 7"%(sWQOFF,sUQ),"s_and_b32 s%d, s%d, 1"%(sD,sJ),"s_lshl_b32 s%d, s%d, 6"%(sD,sD),"s_add_u32 s%d, s%d, s%d"%(sWQOFF,sWQOFF,sD),
        "s_mul_i32 s%d, s%d, %d"%(sD,sW,64*3584),"s_add_u32 s%d, s%d, s%d"%(sWQOFF,sWQOFF,sD),
        "v_lshrrev_b32 v%d, 2, v%d"%(t+4,vLANE),"v_and_b32 v%d, 3, v%d"%(t+5,vLANE),"v_lshlrev_b32 v%d, 4, v%d"%(t+5,t+5),
        "s_movk_i32 s%d, 3584"%sD,"v_mad_u32_u24 v%d, v%d, s%d, v%d"%(vWQT,t+4,sD,t+5),
        "s_lshl_b32 s%d, s%d, 30"%(sD,sISH),"v_add_u32 v%d, s%d, v%d"%(vWQT,sD,vWQT)]
    L+=["v_and_b32 v%d, 31, v%d"%(t+4,vLANE),"s_lshl_b32 s%d, s%d, 5"%(sD,sNW),"v_add_lshl_u32 v%d, s%d, v%d, 1"%(t+5,sD,t+4),
        "s_mul_i32 s%d, s%d, s%d"%(sD,sU1,sISH),"s_lshl_b32 s%d, s%d, 7"%(sD,sD),"v_add_u32 v%d, s%d, v%d"%(t+6,sD,t+5),
        "global_load_ushort v%d, v%d, s[%d:%d]"%(vB1a,t+6,S_B1,S_B1+1),
        "s_lshl_b32 s%d, s%d, 7"%(sD,sU2),"v_add_u32 v%d, s%d, v%d"%(t+7,sD,t+5),
        "global_load_ushort v%d, v%d, s[%d:%d]"%(vB1b,t+7,S_B1,S_B1+1),
        "s_and_b32 s%d, s%d, 1"%(sD,sJ),"s_lshl1_add_u32 s%d, s%d, s%d"%(sD,sUQ,sD),"s_lshl_b32 s%d, s%d, 6"%(sD,sD),"v_lshlrev_b32 v%d, 1, v%d"%(t+6,t+4),
        "v_add_u32 v%d, s%d, v%d"%(t+6,sD,t+6),
        "global_load_ushort v%d, v%d, s[%d:%d]"%(vB1c,t+6,S_B1,S_B1+1)]
    L+=["s_lshl_b32 s%d, s%d, 9"%(sD,sNW),"s_add_u32 s%d, s%d, %d"%(sD,sD,LDS_CS),"v_lshlrev_b32 v%d, 4, v%d"%(t+5,t+4),"v_add_u32 v%d, s%d, v%d"%(vCSR,sD,t+5),
        "s_lshl_b32 s%d, s%d, 2"%(sD,sMW),"v_add_u32 v%d, s%d, v%d"%(vCSW,sD,vCSR),
        "v_lshlrev_b32 v%d, 3, v%d"%(vRECA,t+4)]
    L+=["s_lshl2_add_u32 s%d, s%d, s%d"%(sT4,sTB,sMW),
        "s_lshl_b32 s%d, s%d, 8"%(sT5,sT4),"s_add_u32 s%d, s%d, %d"%(sT5,sT5,WS_ST),
        "s_lshl_b32 s%d, s%d, 1"%(sD,sNW),
        "s_lshl2_add_u32 s%d, s%d, s%d"%(sST0,sU0,sD),"s_lshl_b32 s%d, s%d, 6"%(sST0,sST0),"s_add_u32 s%d, s%d, s%d"%(sST0,sST0,sT4),"s_lshl_b32 s%d, s%d, 10"%(sST0,sST0),
        "s_add_u32 s%d, s%d, 65536"%(sT0,sST0),"s_add_u32 s%d, s%d, %d"%(sT2,sST0,4*65536),"s_add_u32 s%d, s%d, %d"%(sT1,sST0,5*65536),
        "s_mul_i32 s%d, s%d, 112"%(sT6,sT4),"s_add_u32 s%d, s%d, s%d"%(sT7,sT6,sD),
        "s_lshl2_add_u32 s%d, s%d, s%d"%(sST2,sU2,sT7),"s_lshl_b32 s%d, s%d, 10"%(sST2,sST2),"s_add_u32 s%d, s%d, %d"%(sST2,sST2,WS_H),
        "s_sub_u32 s%d, s%d, 4096"%(sST1,sST2),
        ["s_cmp_eq_u32 s%d, 1"%sISH,"s_cselect_b32 s%d, s%d, s%d"%(sST1,sST1,sT2)],
        "s_and_b32 s%d, s%d, 1"%(sD,sJ),"s_lshl1_add_u32 s%d, s%d, s%d"%(sT6,sD,sT6),"s_lshl2_add_u32 s%d, s%d, s%d"%(sST3,sUQ,sT6),"s_lshl_b32 s%d, s%d, 10"%(sST3,sST3),"s_add_u32 s%d, s%d, %d"%(sST3,sST3,WS_H),
        "s_mov_b32 s%d, 0x05040100"%sE,
        "s_mov_b32 s%d, %s"%(sQSC0,hx(f32(0.25*1.4426950408889634))),
        ["s_cmp_lt_u32 s%d, 7"%sU0,"s_cselect_b32 s%d, s%d, 1.0"%(sQSC1,sQSC0)],
        ["s_cmp_lt_u32 s%d, 8"%sU0,"s_cselect_b32 s%d, s%d, 1.0"%(sQSC0,sQSC0)]]
    return L
def touch_items():
    t=vT
    def f(P):
        Lt=P.newlabel("L_notouch")
        P("s_cmp_lg_u32 s%d, 7"%sW); P("s_cbranch_scc1 %s"%Lt)
        P.raw("  s_mul_i32 s%d, s2, 7168"%sD); P.raw("  v_lshlrev_b32 v%d, 7, v%d"%(t+8,vLANE)); P.raw("  v_min_u32 v%d, 7040, v%d"%(t+9,t+8))
        P.raw("  buffer_load_dword v%d, v%d, %s, s%d offen"%(t+10,t+9,srd(S_W2),sD))
        P.raw("  s_lshl_b32 s%d, s2, 11"%sD); P.raw("  v_and_b32 v%d, 0x780, v%d"%(t+8,t+8))
        P.raw("  buffer_load_dword v%d, v%d, %s, s%d offen"%(t+11,t+8,srd(S_WO),sD))
        P.label(Lt)
    return f
def rec_publish(P):
    P.wait_vm("go"); check_go(P,vGO,vZ)
    P("s_lshl_b32 s%d, s%d, 3"%(sD,sT3)); P("s_add_u32 s%d, s%d, %d"%(sD,sD,WS_ST))
    P("s_mov_b32 exec_lo, 0"); P("s_mov_b32 exec_hi, 0x80000000")
    P("buffer_store_dwordx2 v[250:251], v%d, %s, s%d offen sc1"%(vZ,srd(S_WS),sD))
    P("s_mov_b64 exec, -1")
def rec_issue(P,dst,areg,soff,tag):
    P("buffer_load_dwordx2 %s, v%d, %s, s%d offen sc1"%(vr(dst,2),areg,srd(S_WS),soff),tag=tag)
def rec_poll(P,dst,areg,soff,tag):
    P.wait_vm(tag)
    Ls=P.newlabel("L_rspin"); Lk=P.newlabel("L_rok")
    P("s_mov_b32 s%d, %d"%(sT7,SPIN_MAX))
    P.label(Ls)
    P("v_cmp_eq_u32 vcc, 0xbf800000, v%d"%(dst+1))
    P("s_cbranch_vccz %s"%Lk)
    P("s_sub_u32 s%d, s%d, 1"%(sT7,sT7)); P("s_cmp_eq_u32 s%d, 0"%sT7); P("s_cbranch_scc1 %s"%Lk)
    P.raw("  buffer_load_dwordx2 %s, v%d, %s, s%d offen sc1"%(vr(dst,2),areg,srd(S_WS),soff))
    P.raw("  s_waitcnt vmcnt(0)")
    P("s_branch %s"%Ls)
    P.label(Lk)

def rd_stage(st,i):
    b=WBUF[(4*st+i)&3]; imm=IMM[st]
    pre=[]
    if st>0 and SEG[st]!=SEG[st-1]:
        d=SEG[st]-SEG[st-1]
        pre=["v_add_u32 v%d, %s, v%d"%(vXA+i,hx(d),vXA+i),"v_add_u32 v%d, %s, v%d"%(vWA+i,hx(d),vWA+i)]
    a=pre+["ds_read_b128 %s, v%d offset:%d"%(X(4*st+i),vXA+i,imm),
           "ds_read_b64_tr_b16 %s, v%d offset:%d"%(vr(b,2),vWA+i,imm+16384),
           "ds_read_b64_tr_b16 %s, v%d offset:%d"%(vr(b+2,2),vWA+i,imm+16384+512)]
    c=["ds_read_b64_tr_b16 %s, v%d offset:%d"%(vr(b+4,2),vWA+i,imm+24576),
       "ds_read_b64_tr_b16 %s, v%d offset:%d"%(vr(b+6,2),vWA+i,imm+24576+512)]
    return a,c

def rr_of(P_list,rec,t,rr):
    return ["v_add_f32 v%d, %s, v%d"%(t,hx(f32(1e-5)),rec+1),
            "v_rsq_f32 v%d, v%d"%(t,t),
            "v_mul_f32 v%d, v%d, v%d"%(rr,rec+1,t),
            "v_mul_f32 v%d, v%d, v%d"%(rr,rr,t),
            "v_add_f32 v%d, %s, v%d"%(rr,hx(f32(1e-5)),rr),
            "v_rsq_f32 v%d, v%d"%(rr,rr),
            "v_mul_f32 v%d, v%d, v%d"%(rr,rr,t)]
def stats_finalize():
    t=vT
    L=rr_of(None,vREC,t+2,t+3)
    L+=["v_sub_f32 v%d, 0, v%d"%(t,vREC),
        "v_mul_f32 v%d, s%d, v%d"%(vRS0,sQSC0,t+2),
        "v_mul_f32 v%d, s%d, v%d"%(vRS1,sQSC1,t+2),
        "v_rcp_f32 v%d, v%d"%(t+4,t+3),
        "v_mul_f32 v%d, %s, v%d"%(vGA,hx(f32(GELU_A)),t+3),
        "v_mul_f32 v%d, v%d, v%d"%(t+1,t+3,t+3),
        "v_mul_f32 v%d, v%d, v%d"%(t+1,t+1,t+3),
        "v_mul_f32 v%d, %s, v%d"%(vGB,hx(f32(GELU_B)),t+1),
        "v_cvt_pk_bf16_f32 v%d, v%d, v%d"%(t+5,t,t),
        "v_cvt_pk_bf16_f32 v%d, v%d, v%d"%(t+6,t+4,t+4),
        "v_and_b32 v%d, s%d, v%d"%(t+7,sMASKHI,t+5),
        "v_and_b32 v%d, s%d, v%d"%(t+6,sMASKHI,t+6),
        "v_sub_f32 v%d, v%d, v%d"%(t+7,t,t+7),
        "v_sub_f32 v%d, v%d, v%d"%(t+6,t+4,t+6),
        "v_cvt_pk_bf16_f32 v%d, v%d, v%d"%(t+7,t+7,t+4),
        "v_cvt_pk_bf16_f32 v%d, v%d, 0"%(t+6,t+6),
        "v_cndmask_b32 v%d, 0, v%d, s[%d:%d]"%(vAUGX,t+5,sLO32,sLO32+1),
        "v_cndmask_b32 v%d, 0, v%d, s[%d:%d]"%(vAUGX+1,t+7,sLO32,sLO32+1),
        "v_cndmask_b32 v%d, 0, v%d, s[%d:%d]"%(vAUGX+2,t+6,sLO32,sLO32+1),
        "v_mov_b32 v%d, 0"%(vAUGX+3),
        "v_mov_b32 v%d, 0"%(vAUGW+3)]
    return L
def augw(breg, acc, blk, with_mfma=True):
    c=vT+8
    L=["ds_read_b128 %s, v%d offset:%d"%(vr(c,4),vCSR,blk*1024),
       "v_add_f32 v%d, v%d, v%d"%(c,c,c+1),"v_add_f32 v%d, v%d, v%d"%(c+2,c+2,c+3),"v_add_f32 v%d, v%d, v%d"%(c,c,c+2),
       "v_cvt_pk_bf16_f32 v%d, v%d, v%d"%(c+1,c,c),
       "v_and_b32 v%d, s%d, v%d"%(c+2,sMASKHI,c+1),
       "v_sub_f32 v%d, v%d, v%d"%(c+2,c,c+2),
       "v_cvt_pk_bf16_f32 v%d, v%d, v%d"%(vAUGW,c,c+2)]
    if breg is None:
        L+=["v_and_b32 v%d, 0xffff, v%d"%(vAUGW+1,c+1),"v_mov_b32 v%d, 0"%(vAUGW+2)]
    else:
        L+=["v_perm_b32 v%d, v%d, v%d, s%d"%(vAUGW+1,breg,c+1,sE),"v_mov_b32 v%d, v%d"%(vAUGW+2,breg)]
    if with_mfma: L+=[aug_mfma(acc)]
    return L
def aug_mfma(acc): return "v_mfma_f32_32x32x16_bf16 %s, %s, %s, %s"%(vr(acc,16),vr(vAUGW,4),vr(vAUGX,4),vr(acc,16))
def epi_qkv(acc, rs, soff0, soff1, tag):
    L=[]
    for v in range(8): L.append("v_mul_f32 v%d, v%d, v%d"%(acc+v,rs,acc+v))
    for k in range(4): L.append("v_cvt_pk_bf16_f32 v%d, v%d, v%d"%(acc+k,acc+2*k,acc+2*k+1))
    L.append("buffer_store_dwordx4 %s, v%d, %s, s%d offen sc1"%(vr(acc,4),vL16,srd(S_WS),soff0))
    for v in range(8,16): L.append("v_mul_f32 v%d, v%d, v%d"%(acc+v,rs,acc+v))
    for k in range(4,8): L.append("v_cvt_pk_bf16_f32 v%d, v%d, v%d"%(acc+k,acc+2*k,acc+2*k+1))
    L.append(T("buffer_store_dwordx4 %s, v%d, %s, s%d offen sc1"%(vr(acc+4,4),vL16,srd(S_WS),soff1),tag))
    return L
def epi_gelu(acc, nreg, soff, tag, t=None):
    L=[]; t=vT if t is None else t
    for g0 in range(0,nreg,4):
        R=range(g0,g0+4)
        for v in R: L.append("v_mul_f32 v%d, v%d, v%d"%(t+(v&3),acc+v,acc+v))
        for v in R: L.append("v_fma_f32 v%d, v%d, v%d, v%d"%(t+(v&3),t+(v&3),vGB,vGA))
        for v in R: L.append("v_mul_f32 v%d, v%d, v%d"%(t+(v&3),t+(v&3),acc+v))
        for v in R: L.append("v_exp_f32 v%d, v%d"%(t+(v&3),t+(v&3)))
        for v in R: L.append("v_add_f32 v%d, 1.0, v%d"%(t+(v&3),t+(v&3)))
        for v in R: L.append("v_rcp_f32 v%d, v%d"%(t+(v&3),t+(v&3)))
        for v in R: L.append("v_mul_f32 v%d, v%d, v%d"%(acc+v,acc+v,t+(v&3)))
        for k in (g0//2,g0//2+1): L.append("v_cvt_pk_bf16_f32 v%d, v%d, v%d"%(acc+k,acc+2*k,acc+2*k+1))
        if g0==4:
            L.append(T("buffer_store_dwordx4 %s, v%d, %s, s%d offen sc1"%(vr(acc,4),vL16,srd(S_WS),soff),tag))
        if g0==12:
            L.append(T("buffer_store_dwordx4 %s, v%d, %s, s%d offen offset:1024 sc1"%(vr(acc+4,4),vL16,srd(S_WS),soff),tag))
    return L

PB_ORDER=list(range(16))+[16,20,24,28]+[17,18,19,21,22,23,25,26,27,29,30,31]
def pb_reads(p):
    ks=PB_ORDER[p]; q=ks>>2; i=ks&3; b=vWF+4*(p&3)
    return ["ds_read_b64_tr_b16 %s, v%d offset:%d"%(vr(b,2),vWA+i,q*8192),
            "ds_read_b64_tr_b16 %s, v%d offset:%d"%(vr(b+2,2),vWA+i,q*8192+512)]
def pc_reads(ks,areg,b):
    q=ks>>2; i=ks&3
    return ["ds_read_b64_tr_b16 %s, v%d offset:%d"%(vr(b,2),areg+i,q*4096),
            "ds_read_b64_tr_b16 %s, v%d offset:%d"%(vr(b+2,2),areg+i,q*4096+256)]

CFG=[None]
def p1(P,cfg):
    t=vT; CFG[0]=cfg
    p1_prologue(P,cfg)
    stamp(P,cfg,"setup")
    P.wait_vm("st0")
    P("s_barrier")
    stamp(P,cfg,"st0 landed")
    for i in (0,1):
        a,c=rd_stage(0,i); emit(P,a+c)
    S=Sched()
    late=p1_late_setup(cfg)
    for st in range(8):
        base=S.n()
        for i in range(4):
            b=WBUF[(4*st+i)&3]; first=(st==0 and i==0)
            S.main("v_mfma_f32_32x32x16_bf16 %s, %s, %s, %s"%(vr(vACC0,16),vr(b,4),X(4*st+i),"0" if first else vr(vACC0,16)))
            S.main("v_mfma_f32_32x32x16_bf16 %s, %s, %s, %s"%(vr(vACC1,16),vr(b+4,4),X(4*st+i),"0" if first else vr(vACC1,16)))
            if i==0:
                S.main("v_mfma_f32_16x16x32_bf16 %s, %s, %s, %s"%(vr(vCS0,4),vr(vSEL,4),vr(b,4),"0" if st==0 else vr(vCS0,4)))
                S.main("v_mfma_f32_16x16x32_bf16 %s, %s, %s, %s"%(vr(vCS1,4),vr(vSEL,4),vr(b+4,4),"0" if st==0 else vr(vCS1,4)))
        nods=getattr(cfg,'nods',False)
        if not nods:
            a,c=rd_stage(st,2); S.put(base+0,a); S.put(base+1,c)
            a,c=rd_stage(st,3); S.put(base+3,a); S.put(base+4,c)
        bw=[lambda P,st=st: P.wait_vm("st%d"%(st+1) if st<7 else "w2_0"),"s_barrier"]
        if st==7: bw=[lambda P: P.wait_lgkm0()]+bw
        if getattr(cfg,'nowait',False): bw=bw[1:]
        if getattr(cfg,'nobar',False): bw=bw[:-1]
        if cfg.stamps and st in (0,3,7): bw.append(lambda P,st=st: stamp(P,cfg,"1a bar%d"%st))
        S.before(base+6,bw)
        if st<7:
            if not nods:
                a,c=rd_stage(st+1,0); S.put(base+6,a); S.put(base+7,c)
                a,c=rd_stage(st+1,1); S.put(base+8,a); S.put(base+9,c)
        else:
            d=LDS_W2-SEG[7]
            S.put(base+6,["v_add_u32 v%d, %s, v%d"%(vWA+0,hx(d),vWA+0)]+pb_reads(0))
            S.put(base+8,["v_add_u32 v%d, %s, v%d"%(vWA+1,hx(d),vWA+1)]+pb_reads(1))
            S.put(base+9,["v_add_u32 v%d, %s, v%d"%(vWA+2,hx(d),vWA+2),"v_add_u32 v%d, %s, v%d"%(vWA+3,hx(d),vWA+3)])
        if st<=4: D=dma_stage(st+3)
        elif st==5: D=dma_w2(0)
        elif st==6: D=dma_w2(1)
        else: D=dma_wq()
        if getattr(cfg,'nodma',False) and st<=4: D=[]
        for x,g in zip(D,(1,3,5,8)): S.put(base+g,x)
        if st==0:
            S.put(base+2,lambda P: setup_rest(P,cfg))
            S.spread(stat_reduce(),base+0,base+8)
            S.spread(late,base+9,base+29)
        if st==3: S.put(base+0,T("global_load_dword v%d, v%d, s[%d:%d] sc1"%(vGO,vZ,S_DBG,S_DBG+1),"go"))
        if st==4 and not getattr(cfg,'norec',False): S.put(base+7,lambda P: rec_publish(P))
        if st==5 and cfg.touch: S.put(base+7,touch_items())
        if st==7: S.put(base+0,["s_mov_b32 s%d, s%d"%(sT2,sT5),lambda P: rec_issue(P,vREC,vRECA,sT5,"rec")])
    S.emit(P)
    stamp(P,cfg,"1a done")
    P("ds_write_b32 v%d, v%d"%(vCSW,vCS0)); P("ds_write_b32 v%d, v%d offset:1024"%(vCSW,vCS1))
    Lh=P.newlabel("L_passB_h"); Lj=P.newlabel("L_passB_done")
    P("s_cmp_eq_u32 s%d, 1"%sISH)
    P("s_cbranch_scc1 %s"%Lh)
    P.save_state("pb")
    for typ in (0,1):
        if typ==1:
            P.label(Lh); P.restore_state("pb")
        S=Sched(); gp=[]
        for p,ks in enumerate(PB_ORDER):
            b=vWF+4*(p&3)
            g=S.main("v_mfma_f32_32x32x16_bf16 %s, %s, %s, %s"%(vr(vACC2,16),vr(b,4),X(ks),"0" if p==0 else vr(vACC2,16)))
            gp.append(g)
            if (ks&3)==0:
                S.main("v_mfma_f32_16x16x32_bf16 %s, %s, %s, %s"%(vr(vCS0,4),vr(vSEL,4),vr(b,4),"0" if ks==0 else vr(vCS0,4)))
            if p+2<32: S.put(g,pb_reads(p+2))
        S.before(gp[1],[lambda P: P.wait_lgkm0(),"s_barrier"]+([lambda P: stamp(P,cfg,"X1")] if cfg.stamps else []))
        if cfg.stop_after is None:
            S.put(gp[1],lambda P: g2_indices(P))
            W=g2_w_items(0)+g2_w_items(1)+g2_w_items(2)
            S.spread(W,gp[3],gp[20])
        S.before(gp[13],[lambda P: stamp(P,cfg,"preX2"),lambda P: P.wait_vm("w2_1"), lambda P: P.wait_vm("wq"),"s_barrier",lambda P: stamp(P,cfg,"X2")])
        fill=[]
        if not getattr(cfg,'norec',False): fill+=[lambda P: rec_poll(P,vREC,vRECA,sT2,"rec")]
        fill+=stats_finalize()+augw(None,vACC0,0)+augw((vB1a if typ else None),vACC1,1)
        fill+=epi_qkv(vACC0,vRS0,sST0,sT0,"qkv")
        if typ==0: fill+=epi_qkv(vACC1,vRS1,sST1,sT1,"qkv")
        else: fill+=epi_gelu(vACC1,16,sST1,"h1")
        S.spread(fill,gp[1],gp[16] if typ==0 else gp[27])
        S.before(gp[21],"ds_write_b32 v%d, v%d offset:2048"%(vCSW,vCS0))
        wa=["s_xor_b32 s%d, s%d, s%d"%(sC,sMW,sNW),"s_lshl_b32 s%d, s%d, 10"%(sC,sC),
            "v_and_b32 v%d, 3, v%d"%(vXA,vLANE),"v_lshlrev_b32 v%d, 3, v%d"%(vXA,vXA),
            "v_bfe_u32 v%d, v%d, 4, 1"%(vXA+1,vLANE),"v_lshl_or_b32 v%d, v%d, 5, v%d"%(vXA,vXA+1,vXA),
            "v_bfe_u32 v%d, v%d, 2, 2"%(vXA+1,vLANE),"v_lshl_or_b32 v%d, v%d, 6, v%d"%(vXA,vXA+1,vXA),
            "v_lshrrev_b32 v%d, 5, v%d"%(vXA+1,vLANE),"v_lshl_or_b32 v%d, v%d, 9, v%d"%(vXA,vXA+1,vXA),"v_or_b32 v%d, s%d, v%d"%(vXA,sC,vXA)]
        for i in range(1,4): wa+=["v_xor_b32 v%d, %s, v%d"%(vXA+i,hx(1024*i),vXA)]
        assert LDS_WQ==0
        if typ==0: S.put(gp[22],[wa])
        S.before(gp[26],[lambda P: stamp(P,cfg,"preX3"),lambda P: P.wait_lgkm0(), "s_barrier"]+([lambda P: stamp(P,cfg,"X3")] if cfg.stamps else []))
        S.spread(augw(vB1b,vACC2,2,with_mfma=False),gp[28] if typ else gp[27],gp[30])
        S.emit(P)
        P(aug_mfma(vACC2))
        stamp(P,cfg,"preF1")
        f1_publish(P,typ)
        P.wait_lgkm0()
        if typ==0:
            P("s_branch %s"%Lj)
            P.save_state("pb0")
    P.label(Lj); P.merge_state("pb0")
    stamp(P,cfg,"passB done")
    LC=P.newlabel("L_passC_common"); Ln1=P.newlabel("L_passC_nw1"); Lpre1=P.newlabel("L_pre1"); Lj=P.newlabel("L_passC_done")
    att_on=(cfg.stop_after!='p1')
    if att_on: att_indices(P)
    P.save_state("pc")
    P("s_cmp_eq_u32 s%d, 1"%sISH); P("s_cbranch_scc1 %s"%LC)
    P("s_cmp_eq_u32 s%d, 1"%sNW); P("s_cbranch_scc1 %s"%Ln1)
    S=Sched(); gp=[]
    emit(P,pc_reads(0,vXA,vWF)+pc_reads(1,vXA,vWF+4))
    for ks in range(32):
        b=vWF+4*(ks&3)
        g=S.main("v_mfma_f32_32x32x16_bf16 %s, %s, %s, %s"%(vr(vACC0,16),vr(b,4),X(ks),"0" if ks==0 else vr(vACC0,16))); gp.append(g)
        if ks+2<32: S.put(g,pc_reads(ks+2,vXA,vWF+4*((ks+2)&3)))
    S.before(gp[8],[lambda P: P.wait_lgkm0(),"s_barrier"])
    S.spread(epi_gelu(vACC2,16,sST2,"h2"),gp[0],gp[27])
    S.spread(augw(vB1c,vACC0,3,with_mfma=False),gp[27],gp[30])
    S.emit(P)
    P(aug_mfma(vACC0))
    emit(P,epi_gelu(vACC0,16,sST3,"hq"))
    if att_on: att_pre_plain(P,cfg)
    P.wait_lgkm0()
    P("s_branch %s"%Lj)
    P.save_state("pcA")
    P.label(Ln1); P.restore_state("pc")
    for q in range(8):
        emit(P,pc_reads(4*q,vXA,vWF+4*(q&3)))
        if q>=1:
            qq=q-1
            P("v_mfma_f32_16x16x32_bf16 %s, %s, %s, %s"%(vr(vCS0,4),vr(vSEL,4),vr(vWF+4*(qq&3),4),"0" if qq==0 else vr(vCS0,4)))
    P("v_mfma_f32_16x16x32_bf16 %s, %s, %s, %s"%(vr(vCS0,4),vr(vSEL,4),vr(vWF+4*(7&3),4),vr(vCS0,4)))
    P("ds_write_b32 v%d, v%d offset:%d"%(vCSW,vCS0,3072-512))
    P.wait_lgkm0()
    P("s_barrier")
    P.save_state("pcB")
    P.restore_state("pc")
    P.label(LC); P.merge_state("pcB")
    G=epi_gelu(vACC2,16,sST2,"h2")
    if att_on:
        Lpl=P.newlabel("L_plain")
        P("s_cmp_eq_u32 s%d, s%d"%(sNW,sISH)); P("s_cbranch_scc1 %s"%Lpl)
        P.save_state("pcC")
        att_pre_loader(P,cfg,G)
        P.wait_lgkm0()
        P("s_branch %s"%Lj)
        P.save_state("pcD")
        P.label(Lpl); P.restore_state("pcC")
        emit(P,G); att_pre_plain(P,cfg); P.wait_lgkm0()
        P.label(Lj); P.merge_state("pcA"); P.merge_state("pcD")
    else:
        emit(P,G)
        P.label(Lj); P.merge_state("pcA")
    stamp(P,cfg,"P1 done")

def f1_publish(P,typ):
    P("s_lshl2_add_u32 s%d, s%d, s%d"%(sC,sTB,sMW)); P("s_lshl_b32 s%d, s%d, 6"%(sD,sNW)); P("s_add_u32 s%d, s%d, s%d"%(sC,sC,sD))
    P("s_lshl_b32 s%d, s%d, 7"%(sD,sU0)); P("s_add_u32 s%d, s%d, s%d"%(sC,sC,sD)); P("s_lshl_b32 s%d, s%d, 2"%(sC,sC)); P("s_add_u32 s%d, s%d, %d"%(sC,sC,WS_FL+FL1))
    P("v_lshlrev_b32 v%d, 9, v%d"%(vX0,vLANE))
    P("v_mov_b32 v%d, 1"%vX1)
    P.wait_vm("qkv")
    flag_store(P,vX0,vX1,sC,nl=(2 if typ==0 else 1))
def f2_publish(P,vz,vone):
    P("s_lshl2_add_u32 s%d, s%d, s%d"%(sC,sTB,sMW)); P("s_lshl_b32 s%d, s%d, 5"%(sC,sC))
    P("s_lshl2_add_u32 s%d, s%d, s%d"%(sD,sG,sJ)); P("s_lshl1_add_u32 s%d, s%d, s%d"%(sD,sD,sNW)); P("s_add_u32 s%d, s%d, s%d"%(sC,sC,sD))
    P("s_lshl_b32 s%d, s%d, 2"%(sC,sC)); P("s_add_u32 s%d, s%d, %d"%(sC,sC,WS_FL+FL2))
    P("v_mov_b32 v%d, 0"%vz); P("v_mov_b32 v%d, 1"%vone)
    stamp(P,CFG[0],"F2 prewait")
    for tg in ("h1","h2","hq"): P.wait_vm(tg)
    stamp(P,CFG[0],"F2 pub")
    flag_store(P,vz,vone,sC)

aQ=128; aK=132; aV=140; aS=156; aO=188; aM0=204; aM8=220; aKA=236; aVA=237; aT=242; aL16=252; aPOLL=253; aPA=254; aQA=241
NEG=0xF149F2CA
def att_indices(P):
    P("s_lshl_b32 s%d, s%d, 2"%(sHD,sXCD)); P("s_and_b32 s%d, s%d, 3"%(sC,sSLOT)); P("s_add_u32 s%d, s%d, s%d"%(sHD,sHD,sC))
    P("s_lshr_b32 s%d, s%d, 2"%(sQB,sSLOT))
def att_f1_addr(P):
    t=aT
    P("v_lshrrev_b32 v%d, 4, v%d"%(t,vLANE))
    P("v_and_b32 v%d, 15, v%d"%(t+1,vLANE))
    P("s_lshl_b32 s%d, s%d, 3"%(sC,sQB)); P("s_sub_u32 s%d, s%d, 8"%(sD,sC))
    P("v_add_u32 v%d, s%d, v%d"%(t+2,sD,t+1))
    P("v_max_i32 v%d, 0, v%d"%(t+2,t+2))
    P("v_add_u32 v%d, s%d, v%d"%(t+3,sC,t+1))
    P("v_cmp_eq_u32 vcc, 2, v%d"%t); P("v_cndmask_b32 v%d, v%d, v%d, vcc"%(t+2,t+2,t+3))
    P("v_add_u32 v%d, 1, v%d"%(t+3,t)); P("v_lshlrev_b32 v%d, 3, v%d"%(t+3,t+3)); P("v_cndmask_b32 v%d, v%d, 0, vcc"%(t+3,t+3))
    P("v_add_u32 v%d, s%d, v%d"%(t+3,sXCD,t+3))
    P("s_lshr_b32 s%d, s%d, 1"%(sC,sHD)); P("s_and_b32 s%d, s%d, 1"%(sC,sC)); P("s_lshl_b32 s%d, s%d, 6"%(sC,sC))
    P("v_lshlrev_b32 v%d, 7, v%d"%(t+3,t+3)); P("v_add_u32 v%d, v%d, v%d"%(t+2,t+2,t+3)); P("v_add_u32 v%d, s%d, v%d"%(t+2,sC,t+2))
    P("v_lshlrev_b32 v%d, 2, v%d"%(aPA,t+2))
    P("s_mov_b32 s%d, %d"%(gFL,WS_FL+FL1))
def att_loads(P):
    t=aT
    P("s_cmp_lt_u32 s%d, 2"%sMW); P("s_cselect_b32 s%d, 0x40000000, 0"%sC)
    P("s_cmp_eq_u32 s%d, 0"%sQB); P("s_cselect_b32 s%d, s%d, 0"%(sC,sC))
    P("v_add_u32 v%d, s%d, v%d"%(t,sC,aL16))
    P("s_lshl_b32 s%d, s%d, 3"%(sC,sQB)); P("s_lshl_b32 s%d, s%d, 2"%(sD,sMW)); P("s_add_u32 s%d, s%d, s%d"%(sC,sC,sD)); P("s_sub_u32 s%d, s%d, 8"%(sC,sC))
    P("s_add_u32 s%d, s%d, 32"%(sD,sHD)); P("s_lshl_b32 s%d, s%d, 6"%(sD,sD)); P("s_add_u32 s%d, s%d, s%d"%(sD,sD,sC)); P("s_lshl_b32 s%d, s%d, 10"%(sD,sD))
    P("s_add_u32 s%d, s%d, %d"%(sT0,sD,32*64*1024))
    P("s_lshl_b32 s%d, s%d, 12"%(sT1,sMW))
    P("s_add_u32 m0, s%d, %d"%(sT1,LDS_K))
    for b in range(4):
        P("buffer_load_dwordx4 v%d, %s, s%d offen offset:%d sc1 lds"%(t,srd(S_WS),sD,b*1024))
    P("s_lshl_b32 s%d, s%d, 6"%(sC,sHD)); P("s_lshl_b32 s%d, s%d, 3"%(sD,sQB)); P("s_add_u32 s%d, s%d, s%d"%(sC,sC,sD)); P("s_lshl_b32 s%d, s%d, 1"%(sD,sMW))
    P("s_add_u32 s%d, s%d, s%d"%(sC,sC,sD)); P("s_lshl_b32 s%d, s%d, 10"%(sC,sC))
    P("s_lshl_b32 s%d, s%d, 11"%(sD,sMW)); P("s_add_u32 m0, s%d, %d"%(sD,LDS_Q))
    P("buffer_load_dwordx4 v%d, %s, s%d offen sc1 lds"%(aL16,srd(S_WS),sC))
    P("buffer_load_dwordx4 v%d, %s, s%d offen offset:1024 sc1 lds"%(aL16,srd(S_WS),sC))
    P("s_mul_i32 s%d, s%d, %d"%(sT1,sMW,4*VSTRIDE))
    for b in range(4):
        P("s_add_u32 m0, s%d, %d"%(sT1,LDS_V+b*VSTRIDE)); P("s_add_u32 s%d, s%d, %d"%(sC,sT0,b*1024))
        P("buffer_load_dwordx4 v%d, %s, s%d offen sc1 lds"%(t,srd(S_WS),sC), tag="kvq")
def att_setup(P):
    t=aT
    P("v_lshrrev_b32 v%d, 2, v%d"%(t,vLANE)); P("v_and_b32 v%d, 3, v%d"%(t+1,vLANE))
    P("v_mul_u32_u24 v%d, %d, v%d"%(t+2,VSTRIDE,t)); P("v_lshl_add_u32 v%d, v%d, 3, v%d"%(t+2,t+1,t+2)); P("v_add_u32 v%d, %d, v%d"%(t+2,LDS_V+1024,t+2))
    P("s_cmp_eq_u32 s%d, 0"%sQB); P("s_cselect_b32 s%d, 8, 0"%sC)
    P("v_cmp_le_u32 vcc, s%d, v%d"%(sC,t))
    P("v_mov_b32 v%d, 0x3f80"%(t+4)); P("v_cndmask_b32 v%d, 0, v%d, vcc"%(t+4,t+4))
    P("v_cmp_gt_u32 vcc, 2, v%d"%(t+1)); P("v_cndmask_b32 v%d, 0, v%d, vcc"%(t+4,t+4)); P("v_mov_b32 v%d, 0"%(t+5))
    P("ds_write_b64 v%d, %s"%(t+2,vr(t+4,2)))
    P("s_lshl_b32 s%d, s%d, 10"%(sC,sW)); P("s_add_u32 s%d, s%d, %d"%(sD,sC,LDS_K)); P("v_add_u32 v%d, s%d, v%d"%(aKA,sD,aL16))
    P("s_add_u32 s%d, s%d, %d"%(sD,sC,LDS_Q)); P("v_add_u32 v%d, s%d, v%d"%(aQA,sD,aL16))
    P("v_and_b32 v%d, 15, v%d"%(t,vLANE)); P("v_lshrrev_b32 v%d, 2, v%d"%(t,t))
    P("v_and_b32 v%d, 3, v%d"%(t+1,vLANE))
    P("v_lshrrev_b32 v%d, 5, v%d"%(t+2,vLANE))
    P("v_lshl_add_u32 v%d, v%d, 2, v%d"%(t+3,t+2,t)); P("v_lshlrev_b32 v%d, 4, v%d"%(t+3,t+3))
    P("v_and_b32 v%d, 1, v%d"%(t+4,t+1)); P("v_lshl_add_u32 v%d, v%d, 9, v%d"%(t+3,t+4,t+3))
    P("v_lshrrev_b32 v%d, 1, v%d"%(t+4,t+1)); P("v_lshl_add_u32 v%d, v%d, 3, v%d"%(t+3,t+4,t+3))
    P("v_lshlrev_b32 v%d, 3, v%d"%(t+4,t+1)); P("v_add_u32 v%d, 1024, v%d"%(t+4,t+4))
    P("s_mul_i32 s%d, s%d, %d"%(sC,sW,VSTRIDE)); P("s_add_u32 s%d, s%d, %d"%(sC,sC,LDS_V))
    P("v_lshrrev_b32 v%d, 4, v%d"%(t+5,vLANE)); P("v_and_b32 v%d, 1, v%d"%(t+5,t+5)); P("v_cmp_eq_u32 vcc, 1, v%d"%(t+5))
    for k in range(4):
        P("v_add_u32 v%d, %d, v%d"%(t+6,(k>>1)*256+(k&1)*128,t+3))
        P("v_cndmask_b32 v%d, v%d, v%d, vcc"%(t+6,t+6,t+4))
        P("v_add_u32 v%d, s%d, v%d"%(aVA+k,sC,t+6))
    P("v_and_b32 v%d, 31, v%d"%(t,vLANE)); P("v_lshlrev_b32 v%d, 2, v%d"%(t+2,t+2)); P("v_sub_u32 v%d, v%d, v%d"%(t,t,t+2))
    P("v_mov_b32 v%d, %s"%(t+1,hx(NEG)))
    prs=[52,54,56,58]
    for v0 in range(0,16,4):
        for k in range(4):
            v=v0+k; cv=8*(v//4)+v%4
            P("v_cmp_gt_i32 s[%d:%d], %d, v%d"%(prs[k],prs[k]+1,cv,t))
        for k in range(4):
            v=v0+k
            P("v_cndmask_b32 v%d, v%d, 0, s[%d:%d]"%(aM0+v,t+1,prs[k],prs[k]+1))
            P("v_cndmask_b32 v%d, 0, v%d, s[%d:%d]"%(aM8+v,t+1,prs[k],prs[k]+1))
def att_pre_plain(P,cfg):
    P("v_lshlrev_b32 v%d, 4, v%d"%(aL16,vLANE))
    att_setup(P)
    f2_publish(P,aPA,aPOLL)
def att_pre_loader(P,cfg,G):
    P("s_setprio 1")
    P("v_lshlrev_b32 v%d, 4, v%d"%(aL16,vLANE))
    att_f1_addr(P)
    poll_issue(P,aPA,aPOLL,40,gFL,"f1")
    q=len(G)//4
    emit(P,G[:q])
    P.wait_vm("f1")
    poll(P,aPA,aPOLL,40,gFL)
    stamp(P,cfg,"F1 ok")
    att_loads(P)
    P("s_setprio 0")
    emit(P,G[q:])
    att_setup(P)
    P.wait_vm("kvq")
    f2_publish(P,aPA,aPOLL)

def att_kread(j): return ["ds_read_b128 %s, v%d offset:%d"%(vr(aK+4*(j&1),4),aKA,j*1024)]
def att_vread(j):
    b=aV+8*(j&1)
    return ["ds_read_b64_tr_b16 %s, v%d offset:%d"%(vr(b+2*k,2),aVA+k,j*VSTRIDE) for k in range(4)]
def att_qk(j):
    C="0"
    if j==0: C=vr(aM0,16)
    if j==8: C=vr(aM8,16)
    return ["v_mfma_f32_32x32x16_bf16 %s, %s, %s, %s"%(vr(aS+16*(j&1),16),vr(aK+4*(j&1),4),vr(aQ,4),C)]
def att_main(P,cfg,hooks={}):
    emit(P,["ds_read_b128 %s, v%d"%(vr(aQ,4),aQA)]+att_kread(0)+att_kread(1)+att_vread(0)+att_qk(0))
    for j in range(9):
        S=aS+16*(j&1); b=aV+8*(j&1)
        if j<8: emit(P,att_qk(j+1))
        if j<7: emit(P,att_kread(j+2))
        if j<8: emit(P,att_vread(j+1))
        for v in range(8): P("v_exp_f32 v%d, v%d"%(S+v,S+v))
        for k in range(4):
            P("v_cvt_pk_bf16_f32 v%d, v%d, v%d"%(S+k,S+2*k,S+2*k+1))
        for v in range(8,12): P("v_exp_f32 v%d, v%d"%(S+v,S+v))
        P("v_mfma_f32_32x32x16_bf16 %s, %s, %s, %s"%(vr(aO,16),vr(b,4),vr(S,4),"0" if j==0 else vr(aO,16)))
        for v in range(12,16): P("v_exp_f32 v%d, v%d"%(S+v,S+v))
        for k in range(4,8): P("v_cvt_pk_bf16_f32 v%d, v%d, v%d"%(S+k,S+2*k,S+2*k+1))
        P("v_mfma_f32_32x32x16_bf16 %s, %s, %s, %s"%(vr(aO,16),vr(b+4,4),vr(S+4,4),vr(aO,16)))
        if j in hooks: hooks[j](P)
def att_fallback(P):
    t=aT; R=P.raw
    L1=P.newlabel("L_fb1"); L2=P.newlabel("L_fb2")
    def qk_masked(lab):
        R("  ds_read_b128 %s, v%d"%(vr(aK,4),t)); R("  s_waitcnt lgkmcnt(0)")
        La=P.newlabel(lab+"a"); Lb=P.newlabel(lab+"b"); Lc=P.newlabel(lab+"c")
        R("  s_cmp_eq_u32 s%d, 0"%sT0); R("  s_cbranch_scc1 %s"%La)
        R("  s_cmp_eq_u32 s%d, 8"%sT0); R("  s_cbranch_scc1 %s"%Lb)
        R("  v_mfma_f32_32x32x16_bf16 %s, %s, %s, 0"%(vr(aS,16),vr(aK,4),vr(aQ,4))); R("  s_branch %s"%Lc)
        R("%s:"%La); R("  v_mfma_f32_32x32x16_bf16 %s, %s, %s, %s"%(vr(aS,16),vr(aK,4),vr(aQ,4),vr(aM0,16))); R("  s_branch %s"%Lc)
        R("%s:"%Lb); R("  v_mfma_f32_32x32x16_bf16 %s, %s, %s, %s"%(vr(aS,16),vr(aK,4),vr(aQ,4),vr(aM8,16)))
        R("%s:"%Lc); R("  s_nop 15")
    R("  s_sub_u32 s%d, 8, s%d"%(sT1,sW)); R("  s_cmp_eq_u32 s%d, 0"%sQB); R("  s_cselect_b32 s%d, s%d, 0"%(sT1,sT1))
    R("  s_mov_b32 s%d, s%d"%(sT0,sT1))
    R("  s_lshl_b32 s%d, s%d, 10"%(sT2,sT0)); R("  v_add_u32 v%d, s%d, v%d"%(t,sT2,aKA))
    R("  v_mov_b32 v%d, %s"%(t+1,hx(NEG)))
    R("%s:"%L1)
    qk_masked("L_fq1")
    for v in range(0,16,2): R("  v_max3_f32 v%d, v%d, v%d, v%d"%(t+1,aS+v,aS+v+1,t+1))
    R("  v_add_u32 v%d, 1024, v%d"%(t,t))
    R("  s_add_u32 s%d, s%d, 1"%(sT0,sT0)); R("  s_cmp_lt_u32 s%d, 9"%sT0); R("  s_cbranch_scc1 %s"%L1)
    R("  v_mov_b32 v%d, v%d"%(t+2,t+1)); R("  s_nop 1"); R("  v_permlane32_swap_b32 v%d, v%d"%(t+1,t+2)); R("  s_nop 1")
    R("  v_max_f32 v%d, v%d, v%d"%(t+1,t+1,t+2))
    for v in range(16): R("  v_mov_b32 v%d, 0"%(aO+v))
    R("  s_mov_b32 s%d, s%d"%(sT0,sT1))
    R("  s_lshl_b32 s%d, s%d, 10"%(sT2,sT0)); R("  v_add_u32 v%d, s%d, v%d"%(t,sT2,aKA))
    R("  s_mul_i32 s%d, s%d, %d"%(sT2,sT0,VSTRIDE))
    for k in range(4): R("  v_add_u32 v%d, s%d, v%d"%(t+3+k,sT2,aVA+k))
    R("%s:"%L2)
    qk_masked("L_fq2")
    for k in range(4): R("  ds_read_b64_tr_b16 %s, v%d"%(vr(aV+2*k,2),t+3+k))
    for v in range(16): R("  v_sub_f32 v%d, v%d, v%d"%(aS+v,aS+v,t+1))
    for v in range(16): R("  v_exp_f32 v%d, v%d"%(aS+v,aS+v))
    R("  s_nop 1")
    for k in range(8): R("  v_cvt_pk_bf16_f32 v%d, v%d, v%d"%(aS+k,aS+2*k,aS+2*k+1))
    R("  s_waitcnt lgkmcnt(0)"); R("  s_nop 1")
    R("  v_mfma_f32_32x32x16_bf16 %s, %s, %s, %s"%(vr(aO,16),vr(aV,4),vr(aS,4),vr(aO,16)))
    R("  v_mfma_f32_32x32x16_bf16 %s, %s, %s, %s"%(vr(aO,16),vr(aV+4,4),vr(aS+4,4),vr(aO,16)))
    R("  v_add_u32 v%d, 1024, v%d"%(t,t))
    for k in range(4): R("  v_add_u32 v%d, %d, v%d"%(t+3+k,VSTRIDE,t+3+k))
    R("  s_add_u32 s%d, s%d, 1"%(sT0,sT0)); R("  s_cmp_lt_u32 s%d, 9"%sT0); R("  s_cbranch_scc1 %s"%L2)
    R("  s_nop 15")


def att(P,cfg):
    t=aT
    P("s_barrier")
    stamp(P,cfg,"KV landed")
    hooks={}
    if cfg.stop_after is None: hooks.update(g2_att_hooks(cfg))
    att_main(P,cfg,hooks)
    Lok=P.newlabel("L_attok")
    P("v_mov_b32 v%d, %s"%(t,hx(f32(2.0**-30)))); P("v_mov_b32 v%d, %s"%(t+1,hx(f32(2.0**30))))
    P("v_cmp_gt_f32 vcc, v%d, v%d"%(aO+8,t)); P("v_cmp_lt_f32 s[%d:%d], v%d, v%d"%(sT0,sT1,aO+8,t+1))
    P("s_and_b64 vcc, vcc, s[%d:%d]"%(sT0,sT1)); P("s_cmp_eq_u64 vcc, -1")
    if cfg.force_fallback: P("s_cmp_eq_u32 0, 1")
    P("s_cbranch_scc1 %s"%Lok)
    P.fence()
    att_fallback(P)
    P.label(Lok)
    P("v_rcp_f32 v%d, v%d"%(t,aO+8))
    P("s_lshl_b32 s%d, s%d, 3"%(sC,sQB)); P("s_add_u32 s%d, s%d, s%d"%(sC,sC,sW)); P("s_lshl_b32 s%d, s%d, 5"%(sC,sC)); P("s_add_u32 s%d, s%d, s%d"%(sC,sC,sHD))
    P("s_lshl_b32 s%d, s%d, 2"%(sT4,sC)); P("s_add_u32 s%d, s%d, %d"%(sT4,sT4,WS_FL+FL3))
    P("s_lshl_b32 s%d, s%d, 10"%(sC,sC)); P("s_add_u32 s%d, s%d, %d"%(sC,sC,WS_O))
    for v in range(8): P("v_mul_f32 v%d, v%d, v%d"%(aO+v,aO+v,t))
    for k in range(4): P("v_cvt_pk_bf16_f32 v%d, v%d, v%d"%(aO+k,aO+2*k,aO+2*k+1))
    P("buffer_store_dwordx4 %s, v%d, %s, s%d offen sc1"%(vr(aO,4),aL16,srd(S_WS),sC), tag="o")
    stamp(P,cfg,"ATT done")

gWV=18
NOROT=[False]
gHA=2; gHA2=3; gWA=4; gWA2=5; gF=20; gG=52; gS=68; gB2=84; gX=88; gPA=92; gPOLL=93; gXA=94; gT=98; gREC=114; gRR=116; gRA=117; gL16=252
def g2_indices(P):
    t=vT
    P("s_lshl_b32 s%d, s%d, 2"%(sT2B,sXCD)); P("s_lshr_b32 s%d, s%d, 3"%(sC,sSLOT)); P("s_add_u32 s%d, s%d, s%d"%(sT2B,sT2B,sC))
    P("s_and_b32 s%d, s%d, 7"%(sC2,sSLOT))
    P("s_lshr_b32 s%d, s%d, 2"%(sC,sW))
    P("s_lshl_b32 s%d, s%d, 7"%(sD,sC2))
    P("s_mul_i32 s%d, s%d, %d"%(gWB,sC,896*1024)); P("s_add_u32 s%d, s%d, s%d"%(gWB,gWB,sD))
    P("s_mul_i32 s%d, s%d, %d"%(gWOB,sC,256*1024)); P("s_add_u32 s%d, s%d, s%d"%(gWOB,gWOB,sD))
    P("s_lshr_b32 s%d, s%d, 1"%(sD,sW)); P("s_and_b32 s%d, s%d, 1"%(sD,sD)); P("s_lshl_b32 s%d, s%d, 1"%(gHB,sT2B)); P("s_add_u32 s%d, s%d, s%d"%(sD,sD,gHB))
    P("s_and_b32 s%d, s%d, 1"%(gW2K,sW)); P("s_lshl_b32 s%d, s%d, 1"%(gW2K,gW2K))
    P("s_mul_i32 s%d, s%d, 112"%(gHB,sD)); P("s_add_u32 s%d, s%d, s%d"%(gHB,gHB,gW2K))
    P("s_mul_i32 s%d, s%d, 56"%(gOB,sC)); P("s_add_u32 s%d, s%d, s%d"%(gHB,gHB,gOB)); P("s_lshl_b32 s%d, s%d, 10"%(gHB,gHB)); P("s_add_u32 s%d, s%d, %d"%(gHB,gHB,WS_H))
    P("s_lshl_b32 s%d, s%d, 5"%(gOB,sD)); P("s_add_u32 s%d, s%d, s%d"%(gOB,gOB,gW2K)); P("s_lshl_b32 s%d, s%d, 4"%(sC,sC)); P("s_add_u32 s%d, s%d, s%d"%(gOB,gOB,sC))
    P("s_lshl_b32 s%d, s%d, 10"%(gOB,gOB)); P("s_add_u32 s%d, s%d, %d"%(gOB,gOB,WS_O))
    P("s_lshl_b32 s%d, s%d, 11"%(gW2K,sW))
    P("s_mul_i32 s%d, s%d, 7"%(gROT,sC2)); P("s_lshr_b32 s%d, s%d, 2"%(gROT,gROT))
    P("s_lshr_b32 s%d, s%d, 3"%(sC,sSLOT)); P("s_mul_i32 s%d, s%d, 7"%(sC,sC)); P("s_lshr_b32 s%d, s%d, 1"%(sC,sC)); P("s_add_u32 s%d, s%d, s%d"%(gROT,gROT,sC))
    P("s_sub_u32 s%d, s%d, 14"%(sC,gROT)); P("s_cmp_ge_u32 s%d, 14"%gROT); P("s_cselect_b32 s%d, s%d, s%d"%(gROT,sC,gROT))
    if NOROT[0]: P("s_mov_b32 s%d, 0"%gROT)
    P("s_lshl_b32 s%d, s%d, 16"%(sC,gROT)); P("s_add_u32 s%d, s%d, s%d"%(gWB,gWB,sC))
    P("s_lshl_b32 s%d, s%d, 12"%(sC,gROT)); P("s_add_u32 s%d, s%d, s%d"%(gHB,gHB,sC))
    P("v_lshrrev_b32 v%d, 3, v%d"%(t,vLANE)); P("v_and_b32 v%d, 7, v%d"%(t+1,vLANE))
    P("v_lshrrev_b32 v%d, 1, v%d"%(t+2,t)); P("v_and_b32 v%d, 1, v%d"%(t+2,t+2)); P("v_lshlrev_b32 v%d, 2, v%d"%(t+2,t+2))
    P("v_xor_b32 v%d, v%d, v%d"%(t+1,t+1,t+2)); P("v_lshlrev_b32 v%d, 4, v%d"%(t+1,t+1))
    P("s_and_b32 s%d, s%d, 3"%(sC,sW)); P("s_lshl_b32 s%d, s%d, 4"%(sC,sC)); P("v_add_u32 v%d, s%d, v%d"%(t,sC,t))
    P("v_lshl_add_u32 v%d, v%d, 10, v%d"%(gWV,t,t+1))
def rot_off(dst,base,st,stride,extra=0):
    return ["s_cmp_ge_u32 s%d, %d"%(gROT,14-st),"s_cselect_b32 s%d, %d, 0"%(dst,14*stride),"s_sub_u32 s%d, s%d, s%d"%(dst,base,dst),
            "s_add_u32 s%d, s%d, %d"%(dst,dst,st*stride+extra)]
def g2_w_items(st):
    slot=WSLOT[st%5]; L=[]
    for p in range(2):
        if st<14:
            pre=rot_off(gWT,gWB,st,65536) if p==0 else []
            L.append(pre+["s_add_u32 m0, s%d, %d"%(gW2K,slot+p*1024),"s_add_u32 s%d, s%d, %d"%(sT5,gWT,8*p*1024) if p else "s_mov_b32 s%d, s%d"%(sT5,gWT),
                      T("buffer_load_dwordx4 v%d, %s, s%d offen lds"%(gWV,srd(S_W2),sT5),"W%d"%st)])
        else:
            L.append(["s_add_u32 m0, s%d, %d"%(gW2K,slot+p*1024),"s_add_u32 s%d, s%d, %d"%(sT5,gWOB,(64*(st-14)+8*p)*1024),
                      T("buffer_load_dwordx4 v%d, %s, s%d offen lds"%(gWV,srd(S_WO),sT5),"W%d"%st)])
    return L
def g2_h_items(st,partner=False):
    slot=HSLOT[st%4]
    so=rot_off(gHT,gHB,st,4096) if st<14 else ["s_add_u32 s%d, s%d, %d"%(gHT,gOB,(st-14)*4096)]
    L=[so+["s_add_u32 m0, s%d, %d"%(gW2K,slot),"buffer_load_dwordx4 v%d, %s, s%d offen sc1 lds"%(gL16,srd(S_WS),gHT)],
       [T("buffer_load_dwordx4 v%d, %s, s%d offen offset:1024 sc1 lds"%(gL16,srd(S_WS),gHT),"H%d"%st)]]
    if partner:
        L+=[["s_add_u32 m0, s%d, %d"%(gW2K,slot+8192),"s_add_u32 s%d, s%d, %d"%(gHT,gHT,56*1024),"buffer_load_dwordx4 v%d, %s, s%d offen sc1 lds"%(gL16,srd(S_WS),gHT)],
            [T("buffer_load_dwordx4 v%d, %s, s%d offen offset:1024 sc1 lds"%(gL16,srd(S_WS),gHT),"H%d"%st)]]
    return L
def g2_att_hooks(cfg):
    def h5i(P):
        P("v_lshlrev_b32 v%d, 2, v%d"%(aPA,vLANE))
        P("s_lshl_b32 s%d, s%d, 8"%(sC,sT2B)); P("s_add_u32 s%d, s%d, %d"%(gFL,sC,WS_FL+FL2))
        poll_issue(P,aPA,aPOLL,64,gFL,"f2")
    def older(f):
        def run(P):
            L=P.newlabel("L_hskip")
            if cfg.stamps: P.wait_lgkm0()
            P("s_cmp_ge_u32 s%d, 4"%sW); P("s_cbranch_scc1 %s"%L)
            P.save_state("hk"); f(P); P.fence(); P.save_state("hk2")
            P.restore_state("hk")
            P.label(L); P.merge_state("hk2")
        return run
    def h6(P):
        stamp(P,cfg,"F2 prepoll")
        P.wait_vm("f2"); poll(P,aPA,aPOLL,64,gFL)
        stamp(P,cfg,"F2 ok")
        emit(P,g2_h_items(0,True)+g2_h_items(1,True))
    def h7(P): emit(P,g2_h_items(2,True))
    def h0(P): emit(P,g2_w_items(3))
    return {0:h0,4:older(h5i),6:older(h6),7:older(h7)}
def g2_reads(st,i):
    b=gF+8*((4*st+i)&3)
    hs=HSLOT[st%4]; ws=WSLOT[st%5]
    ha,ho=(gHA,hs) if hs<65536-4096 else (gHA2,hs-R[6])
    wa,wo=(gWA,ws-R[2]) if ws-R[2]<65536-8192 else (gWA2,ws-R[8])
    return ["ds_read_b128 %s, v%d offset:%d"%(vr(b,4),ha,ho+i*1024),
            "ds_read_b64_tr_b16 %s, v%d offset:%d"%(vr(b+4,2),wa,wo+i*2048),
            "ds_read_b64_tr_b16 %s, v%d offset:%d"%(vr(b+6,2),wa,wo+i*2048+1024)]
def g2_mfma(st,i):
    b=gF+8*((4*st+i)&3); acc=gG if st<14 else gS
    first=(st in (0,14) and i==0)
    return "v_mfma_f32_32x32x16_bf16 %s, %s, %s, %s"%(vr(acc,16),vr(b+4,4),vr(b,4),"0" if first else vr(acc,16))
def g2_xchg_write(P,acc,base):
    La=P.newlabel("L_xa"); Lb=P.newlabel("L_xb")
    P.wait_lgkm0()
    P("s_cmp_ge_u32 s%d, 4"%sW); P("s_cbranch_scc1 %s"%La)
    P.save_state("x")
    P("ds_write_b128 v%d, %s offset:%d"%(gXA,vr(acc+8,4),base)); P("ds_write_b128 v%d, %s offset:%d"%(gXA,vr(acc+12,4),base+1024))
    P.wait_lgkm0()
    P("s_branch %s"%Lb)
    P.label(La); P.restore_state("x")
    P("ds_write_b128 v%d, %s offset:%d"%(gXA,vr(acc,4),base)); P("ds_write_b128 v%d, %s offset:%d"%(gXA,vr(acc+4,4),base+1024))
    P.wait_lgkm0()
    for v in range(8): P("v_mov_b32 v%d, v%d"%(acc+v,acc+8+v))
    P.label(Lb)
def g2(P,cfg):
    t=gT
    P("s_and_b32 s%d, s%d, 1"%(sC,sW)); P("s_lshl_b32 s%d, s%d, 12"%(sC,sC))
    P("s_lshr_b32 s%d, s%d, 2"%(sD,sW)); P("s_lshl_b32 s%d, s%d, 13"%(sD,sD))
    P("s_add_u32 s%d, s%d, s%d"%(sC,sC,sD))
    P("v_add_u32 v%d, s%d, v%d"%(gHA,sC,gL16)); P("v_add_u32 v%d, %d, v%d"%(gHA2,R[6],gHA))
    P("v_and_b32 v%d, 15, v%d"%(t,vLANE)); P("v_lshrrev_b32 v%d, 2, v%d"%(t,t))
    P("v_and_b32 v%d, 3, v%d"%(t+1,vLANE))
    P("v_lshrrev_b32 v%d, 4, v%d"%(t+2,vLANE)); P("v_and_b32 v%d, 1, v%d"%(t+2,t+2)); P("v_lshlrev_b32 v%d, 1, v%d"%(t+2,t+2))
    P("v_lshrrev_b32 v%d, 1, v%d"%(t+3,t+1)); P("v_add_u32 v%d, v%d, v%d"%(t+2,t+2,t+3))
    P("s_lshr_b32 s%d, s%d, 1"%(sC,sW)); P("s_and_b32 s%d, s%d, 1"%(sC,sC)); P("s_lshl_b32 s%d, s%d, 2"%(sT0,sC))
    P("v_add_u32 v%d, s%d, v%d"%(t+2,sT0,t+2))
    P("v_lshrrev_b32 v%d, 1, v%d"%(t+3,t)); P("v_lshlrev_b32 v%d, 2, v%d"%(t+3,t+3)); P("v_xor_b32 v%d, v%d, v%d"%(t+2,t+2,t+3))
    P("v_lshlrev_b32 v%d, 4, v%d"%(t+2,t+2)); P("v_and_b32 v%d, 1, v%d"%(t+3,t+1)); P("v_lshl_add_u32 v%d, v%d, 3, v%d"%(t+2,t+3,t+2))
    P("v_lshrrev_b32 v%d, 5, v%d"%(t+4,vLANE))
    P("v_lshl_add_u32 v%d, v%d, 2, v%d"%(t+3,t+4,t)); P("v_lshl_add_u32 v%d, v%d, 7, v%d"%(t+2,t+3,t+2))
    P("s_add_u32 s%d, s%d, %d"%(sT1,sD,R[2])); P("v_add_u32 v%d, s%d, v%d"%(gWA,sT1,t+2)); P("v_add_u32 v%d, %d, v%d"%(gWA2,R[8]-R[2],gWA))
    P("v_add_u32 v%d, s%d, v%d"%(gXA,gW2K,gL16)); P("v_add_u32 v%d, %d, v%d"%(gXA,R[6],gXA))
    P("s_xor_b32 s%d, s%d, 8192"%(sD,gW2K)); P("v_add_u32 v%d, s%d, v%d"%(gXA+1,sD,gL16)); P("v_add_u32 v%d, %d, v%d"%(gXA+1,R[6],gXA+1))
    P("s_lshl_b32 s%d, s%d, 6"%(sD,sC2)); P("s_lshl_b32 s%d, s%d, 5"%(sC,sC)); P("s_add_u32 s%d, s%d, s%d"%(sD,sD,sC))
    P("s_lshr_b32 s%d, s%d, 2"%(sC,sW)); P("s_lshl_b32 s%d, s%d, 4"%(sC,sC)); P("s_add_u32 s%d, s%d, s%d"%(sD,sD,sC))
    P("v_lshlrev_b32 v%d, 2, v%d"%(t+3,t+4)); P("v_add_u32 v%d, s%d, v%d"%(t+3,sD,t+3)); P("v_lshlrev_b32 v%d, 1, v%d"%(gXA+3,t+3))
    P("v_lshrrev_b32 v%d, 3, v%d"%(t,vLANE)); P("s_lshl_b32 s%d, s%d, 3"%(sC,sW)); P("v_add_u32 v%d, s%d, v%d"%(t,sC,t)); P("v_lshlrev_b32 v%d, 10, v%d"%(t,t))
    P("v_and_b32 v%d, 7, v%d"%(t+1,vLANE)); P("v_lshl_add_u32 v%d, v%d, 4, v%d"%(gXA+2,t+1,t))
    P("s_lshl_b32 s%d, s%d, 16"%(sT1,sT2B)); P("s_lshl_b32 s%d, s%d, 7"%(sC,sC2)); P("s_add_u32 s%d, s%d, s%d"%(sT1,sT1,sC))
    P("v_and_b32 v%d, 31, v%d"%(gRA,vLANE)); P("v_lshlrev_b32 v%d, 3, v%d"%(gRA,gRA))
    P("s_and_b32 s%d, s%d, 1"%(sC,sW)); P("s_lshl1_add_u32 s%d, s%d, s%d"%(sC,sT2B,sC)); P("s_lshl_b32 s%d, s%d, 8"%(sC,sC)); P("s_add_u32 s%d, s%d, %d"%(sT2,sC,WS_ST))
    P.wait_vm("H0")
    P("s_barrier")
    stamp(P,cfg,"G2 start")
    emit(P,g2_reads(0,0)+g2_reads(0,1))
    emit(P,g2_h_items(3)+g2_w_items(4))
    S=Sched()
    for st in range(18):
        base=S.n()
        for i in range(4): S.main(g2_mfma(st,i))
        S.put(base+0,g2_reads(st,2)); S.put(base+1,g2_reads(st,3))
        if st<17:
            bw=[lambda P,st=st: P.wait_vm("H%d"%(st+1)), lambda P,st=st: P.wait_vm("W%d"%(st+1)),"s_barrier"]
            if cfg.stamps and st in (1,5,9,13): bw.append(lambda P,st=st: stamp(P,cfg,"G2 bar%d"%st))
            S.before(base+2,bw)
            S.put(base+2,g2_reads(st+1,0)); S.put(base+3,g2_reads(st+1,1))
            if st>=1:
                D=[]
                if st+3<18: D+=g2_h_items(st+3)
                if st+4<18: D+=g2_w_items(st+4)
                if st==11: S.put(base+2,[lambda P: P.wait_vm("f3"), lambda P: poll(P,gPA,gPOLL,64,gFL)])
                pos=[base+2,base+3,base+4,base+5]
                for x,g in zip(D,pos): S.put(g,x)
            else:
                pass
        if st==0:
            S.put(base+0,["global_load_dwordx2 %s, v%d, s[%d:%d]"%(vr(gB2,2),gXA+3,S_B2,S_B2+1)])
            S.put(base+1,["global_load_dwordx2 %s, v%d, s[%d:%d] offset:16"%(vr(gB2+2,2),gXA+3,S_B2,S_B2+1)])
            S.put(base+3,["buffer_load_dwordx4 %s, v%d, %s, s%d offen"%(vr(gX,4),gXA+2,srd(S_X),sT1)])
        if st==2: S.put(base+0,lambda P: rec_issue(P,gREC,gRA,sT2,"grec"))
        if st==5: S.put(base+0,[lambda P: rec_poll(P,gREC,gRA,sT2,"grec")]+rr_of(None,gREC,gRR+2,gRR))
        if st==1:
            S.put(base+3,[lambda P: P.wait_vm("o"),"v_mov_b32 v%d, 0"%gPA,"v_mov_b32 v%d, 1"%gPOLL, lambda P: flag_store(P,gPA,gPOLL,sT4)])
        if st==8:
            S.put(base+1,["v_lshlrev_b32 v%d, 2, v%d"%(gPA,vLANE),"s_lshl_b32 s%d, s%d, 8"%(sC,sT2B),"s_add_u32 s%d, s%d, %d"%(gFL,sC,WS_FL+FL3),
                          lambda P: poll_issue(P,gPA,gPOLL,64,gFL,"f3")])
        if st==14:
            S.put(base+0,lambda P: g2_xchg_write(P,gG,LDS_XG-R[6]))
    S.emit(P)
    stamp(P,cfg,"G2 loop done")
    P("ds_read_b128 %s, v%d offset:%d"%(vr(t,4),gXA+1,LDS_XG-R[6])); P("ds_read_b128 %s, v%d offset:%d"%(vr(t+4,4),gXA+1,LDS_XG-R[6]+1024))
    u=t+8
    for k in range(4):
        P("v_lshlrev_b32 v%d, 16, v%d"%(u+2*k,gB2+k)); P("v_and_b32 v%d, s%d, v%d"%(u+2*k+1,sMASKHI,gB2+k))
    for v in range(8): P("v_add_f32 v%d, v%d, v%d"%(gG+v,gG+v,t+v))
    for v in range(8): P("v_fma_f32 v%d, v%d, v%d, v%d"%(gG+v,gG+v,gRR,u+v))
    g2_xchg_write(P,gS,LDS_XS-R[6])
    P("s_barrier")
    P("ds_read_b128 %s, v%d offset:%d"%(vr(t,4),gXA+1,LDS_XS-R[6])); P("ds_read_b128 %s, v%d offset:%d"%(vr(t+4,4),gXA+1,LDS_XS-R[6]+1024))
    for v in range(8): P("v_mul_f32 v%d, %s, v%d"%(u+v,hx(f32(-1.4426950408889634)),gG+v))
    for v in range(8): P("v_exp_f32 v%d, v%d"%(u+v,u+v))
    for v in range(8): P("v_add_f32 v%d, 1.0, v%d"%(u+v,u+v))
    for v in range(8): P("v_rcp_f32 v%d, v%d"%(u+v,u+v))
    for v in range(8): P("v_mul_f32 v%d, v%d, v%d"%(gG+v,gG+v,u+v))
    for v in range(8): P("v_add_f32 v%d, v%d, v%d"%(gS+v,gS+v,t+v))
    for v in range(8): P("v_mul_f32 v%d, v%d, v%d"%(gS+v,gS+v,gG+v))
    for k in range(4): P("v_cvt_pk_bf16_f32 v%d, v%d, v%d"%(gS+k,gS+2*k,gS+2*k+1))
    P("v_and_b32 v%d, 31, v%d"%(t,vLANE)); P("s_and_b32 s%d, s%d, 1"%(sC,sW)); P("s_lshl_b32 s%d, s%d, 5"%(sC,sC)); P("v_add_u32 v%d, s%d, v%d"%(t,sC,t))
    P("v_mul_u32_u24 v%d, %d, v%d"%(t,PTP,t))
    P("s_lshr_b32 s%d, s%d, 1"%(sC,sW)); P("s_and_b32 s%d, s%d, 1"%(sC,sC)); P("s_lshl_b32 s%d, s%d, 6"%(sC,sC))
    P("s_lshr_b32 s%d, s%d, 2"%(sD,sW)); P("s_lshl_b32 s%d, s%d, 5"%(sD,sD)); P("s_add_u32 s%d, s%d, s%d"%(sC,sC,sD)); P("s_add_u32 s%d, s%d, %d"%(sC,sC,LDS_PT))
    P("v_lshrrev_b32 v%d, 5, v%d"%(t+1,vLANE)); P("v_lshl_add_u32 v%d, v%d, 3, v%d"%(t,t+1,t)); P("v_add_u32 v%d, s%d, v%d"%(t,sC,t))
    P("ds_write_b64 v%d, %s"%(t,vr(gS,2))); P("ds_write_b64 v%d, %s offset:16"%(t,vr(gS+2,2)))
    P("v_lshrrev_b32 v%d, 3, v%d"%(t+2,vLANE)); P("s_lshl_b32 s%d, s%d, 3"%(sC,sW)); P("v_add_u32 v%d, s%d, v%d"%(t+2,sC,t+2)); P("v_mul_u32_u24 v%d, %d, v%d"%(t+2,PTP,t+2))
    P("v_and_b32 v%d, 7, v%d"%(t+3,vLANE)); P("v_lshl_add_u32 v%d, v%d, 4, v%d"%(t+2,t+3,t+2)); P("v_add_u32 v%d, %d, v%d"%(t+2,LDS_PT,t+2))
    for k in range(4):
        P("v_lshlrev_b32 v%d, 16, v%d"%(u+2*k,gX+k)); P("v_and_b32 v%d, s%d, v%d"%(u+2*k+1,sMASKHI,gX+k))
    P.wait_lgkm0()
    P("s_barrier")
    P("ds_read_b128 %s, v%d"%(vr(t+4,4),t+2))
    for k in range(4):
        P("v_lshlrev_b32 v%d, 16, v%d"%(gG+2*k,t+4+k)); P("v_and_b32 v%d, s%d, v%d"%(gG+2*k+1,sMASKHI,t+4+k))
    for v in range(8): P("v_add_f32 v%d, v%d, v%d"%(u+v,u+v,gG+v))
    for k in range(4): P("v_cvt_pk_bf16_f32 v%d, v%d, v%d"%(u+k,u+2*k,u+2*k+1))
    P("buffer_store_dwordx4 %s, v%d, %s, s%d offen"%(vr(u,4),gXA+2,srd(S_OUT),sT1))
    stamp(P,cfg,"end")

def build(cfg):
    P=Prog()
    NOROT[0]=getattr(cfg,'norot',False)
    setup(P,cfg)
    p1(P,cfg)
    if cfg.stop_after!='p1': att(P,cfg)
    if cfg.stop_after is None: g2(P,cfg)
    stamp_flush(P,cfg)
    if cfg.dbgtime:
        L=P.newlabel("L_nodbg")
        P("s_cmp_lg_u32 s%d, 0"%sW); P("s_cbranch_scc1 %s"%L); P("s_cmp_ge_u32 s2, 6"); P("s_cbranch_scc1 %s"%L)
        P("s_memrealtime s[66:67]"); P("s_memtime s[68:69]"); P("s_waitcnt lgkmcnt(0)")
        P("s_sub_u32 s66, s66, s70"); P("s_sub_u32 s68, s68, s72")
        P("v_mov_b32 v2, s66"); P("v_mov_b32 v3, s68"); P("s_lshl_b32 s66, s2, 3"); P("s_add_u32 s66, s66, 8"); P("v_mov_b32 v4, s66")
        P("s_mov_b64 exec, 1")
        P("global_store_dwordx2 v4, v[2:3], s[%d:%d]"%(S_DBG,S_DBG+1))
        P("s_mov_b64 exec, -1")
        P.label(L)
    P.label("L_end")
    P("s_endpgm")
    body=P.finalize()
    hdr=open("recurrent_scan__sliding_block__mixer_channel_mlp__prompt.s.ref").read().split("; Override")[0]
    s=hdr+"; Generated by my own generator script.\n"
    s+="; @launch grid=(256,1,1) block=(512,1,1) lds=%d\n"%LDS_TOTAL
    s+='.amdgcn_target "amdgcn-amd-amdhsa--gfx950"\n.text\n.globl %s\n.p2align 8\n.type %s,@function\n%s:\n'%(KNAME,KNAME,KNAME)
    s+=body
    s+='.section .rodata,"a"\n.p2align 6\n.amdhsa_kernel %s\n  .amdhsa_next_free_vgpr 256\n  .amdhsa_next_free_sgpr 102\n  .amdhsa_accum_offset 256\n  .amdhsa_group_segment_fixed_size 0\n  .amdhsa_kernarg_size 88\n  .amdhsa_user_sgpr_count 2\n  .amdhsa_user_sgpr_kernarg_segment_ptr 1\n  .amdhsa_system_sgpr_workgroup_id_x 1\n.end_amdhsa_kernel\n'%KNAME
    return s,P.stats

if __name__=="__main__":
    cfg=Cfg()
    out=sys.argv[1] if len(sys.argv)>1 else "k.s"
    for a in sys.argv[2:]:
        k,v=a.split("=")
        setattr(cfg,k,{"0":False,"1":True,"None":None}.get(v,v))
    s,st=build(cfg)
    open(out,"w").write(s)
    if cfg.stamps:
        import json; json.dump(STAMPS,open(out.replace(".s",".json"),"w"))
    print(out,len(s),"bytes",st)
```
